```python
import torch

def _softmax(x, axis=-1):
    return torch.softmax(x, dim=axis)
def _gelu(x):
    return torch.nn.functional.gelu(x, approximate="tanh")
def _silu(x):
    return torch.nn.functional.silu(x)
def _sigmoid(x):
    return torch.sigmoid(x)
def _layernorm(x, axis=-1, eps=1e-5):
    m = x.mean(dim=axis, keepdim=True)
    v = x.var(dim=axis, keepdim=True, unbiased=False)
    return (x - m) / torch.sqrt(v + eps)
def _scatter_add(tgt, idx, src, axis=0):
    return tgt.clone().index_add_(axis, idx, src)
def _segment_sum(src, seg, n):
    out = torch.zeros((n,) + src.shape[1:], dtype=src.dtype)
    return out.index_add_(0, seg, src)
def _pad(x, pw):
    flat = tuple(v for pair in reversed(pw) for v in pair)
    return torch.nn.functional.pad(x, flat)

kernel_name = 'gated_mix__ssm_conv_s5__glu_gated_geglu__prompt'

def setup_inputs():

    _w = (lambda a: (lambda t: t.to(torch.bfloat16) if t.is_floating_point() else t)(torch.as_tensor(a)))
    def _A_setup():
        B, S, D = 1, 2048, 448
        P = D
        Lambda_re = -0.5 * (lambda _x: torch.exp(torch.as_tensor(_x)))((lambda *s: torch.randn(*s, dtype=torch.bfloat16) * 0.4)(P))
        Lambda_im = (lambda *s: torch.randn(*s, dtype=torch.bfloat16) * 0.8)(P) * 1.0
        B_re = (lambda *s: torch.randn(*s, dtype=torch.bfloat16) * 0.8)(P, D) * (D ** -0.5)
        B_im = (lambda *s: torch.randn(*s, dtype=torch.bfloat16) * 0.8)(P, D) * (D ** -0.5)
        C_re = (lambda *s: torch.randn(*s, dtype=torch.bfloat16) * 0.8)(D, P) * (P ** -0.5)
        C_im = (lambda *s: torch.randn(*s, dtype=torch.bfloat16) * 0.8)(D, P) * (P ** -0.5)
        log_dt = (lambda *s: torch.randn(*s, dtype=torch.bfloat16) * 0.4)(P) * 0.3 - 2.0
        Dskip = (lambda *s: torch.randn(*s, dtype=torch.bfloat16) * 0.1)(D)
        return {
            "x": _w((lambda *s: torch.randn(*s, dtype=torch.bfloat16) * 0.05)(B, S, D)),
            "Lambda_re": _w(Lambda_re),
            "Lambda_im": _w(Lambda_im),
            "B_re": _w(B_re),
            "B_im": _w(B_im),
            "C_re": _w(C_re),
            "C_im": _w(C_im),
            "log_dt": _w(log_dt),
            "Dskip": _w(Dskip),
        }
    _A_in = _A_setup()

    def _B_setup():
        B, S, Dm, Df = 1, 2048, 448, 1792
        return {
            "x": _w((lambda *s: torch.randn(*s, dtype=torch.bfloat16) * 0.05)(B, S, Dm)),
            "w_gate": _w((lambda *s: torch.randn(*s, dtype=torch.bfloat16) * 3.2)(Dm, Df) * (Dm ** -0.5)),
            "w_up": _w((lambda *s: torch.randn(*s, dtype=torch.bfloat16) * 3.2)(Dm, Df) * (Dm ** -0.5)),
            "w_down": _w((lambda *s: torch.randn(*s, dtype=torch.bfloat16) * 3.2)(Df, Dm) * (Df ** -0.5)),
        }
    _B_in = _B_setup()

    return {
        "A_x": _A_in["x"],
        "A_Lambda_re": _A_in["Lambda_re"],
        "A_Lambda_im": _A_in["Lambda_im"],
        "A_B_re": _A_in["B_re"],
        "A_B_im": _A_in["B_im"],
        "A_C_re": _A_in["C_re"],
        "A_C_im": _A_in["C_im"],
        "A_log_dt": _A_in["log_dt"],
        "A_Dskip": _A_in["Dskip"],
        "B_x": _B_in["x"],
        "B_w_gate": _B_in["w_gate"],
        "B_w_up": _B_in["w_up"],
        "B_w_down": _B_in["w_down"],
        "gate_w": _w((lambda *s: torch.randn(*s, dtype=torch.bfloat16) * 0.05)(448) * 16.0),
    }

def reference(A_x, A_Lambda_re, A_Lambda_im, A_B_re, A_B_im, A_C_re, A_C_im, A_log_dt, A_Dskip, B_x, B_w_gate, B_w_up, B_w_down, gate_w):
    def _A_ref(x, Lambda_re, Lambda_im, B_re, B_im, C_re, C_im, log_dt, Dskip):
        Bsz, L, H = x.shape
        Lam = Lambda_re + 1j * Lambda_im
        Bmat = B_re + 1j * B_im
        Cmat = C_re + 1j * C_im
        dt = torch.exp(log_dt)
        Lam_bar = torch.exp(dt * Lam)
        B_bar = ((Lam_bar - 1.0) / Lam)[:, None] * Bmat
        Bu = torch.einsum("bld,pd->blp", x + 0j, B_bar)
        h = torch.zeros_like(Bu[:, 0, :])
        hs = []
        for t in range(L):
            h = Lam_bar[None, :] * h + Bu[:, t, :]
            hs.append(h)
        hseq = torch.stack(hs, 1)
        y = 2.0 * torch.einsum("blp,dp->bld", hseq, Cmat).real + x * Dskip[None, None, :]
        return y

    def _B_ref(x, w_gate, w_up, w_down):
        g = torch.einsum("bsd,df->bsf", x, w_gate)
        u = torch.einsum("bsd,df->bsf", x, w_up)
        h = _gelu(g) * u
        return torch.einsum("bsf,fd->bsd", h, w_down)

    x = A_x
    g = _sigmoid((x * gate_w).sum(-1, keepdims=True))
    a = _A_ref(x, A_Lambda_re, A_Lambda_im, A_B_re, A_B_im, A_C_re, A_C_im, A_log_dt, A_Dskip)
    b = _B_ref(x, B_w_gate, B_w_up, B_w_down)
    return g * a + (1 - g) * b
```

```python
import re
REG = re.compile(r'(?<![\w.])(-?)([vas])(?:\[(\d+):(\d+)\]|(\d+))(?![\w])')
TRANS = ('v_exp_f32','v_log_f32','v_rcp_f32','v_rsq_f32','v_sqrt_f32','v_sin_f32','v_cos_f32')
def regs(txt):
    out=[]
    for m in REG.finditer(txt):
        k=m.group(2)
        if m.group(3) is not None: out+= [(k,i) for i in range(int(m.group(3)),int(m.group(4))+1)]
        else: out.append((k,int(m.group(5))))
    if re.search(r'\bvcc\b',txt): out.append(('s','vcc'))
    if re.search(r'\bm0\b',txt): out.append(('s','m0'))
    return out
class I:
    def __init__(s, txt, tag=None):
        s.txt=txt; s.tag=tag
        p=txt.split(None,1); s.op=p[0]; rest=p[1] if len(p)>1 else ''
        ops=[o.strip() for o in re.split(r',(?![^\[]*\])',rest)]
        op=s.op; s.kind='other'; s.d=[]; s.u=[]; s.c=[]
        if op.endswith(':') or op.startswith('.') or op.startswith(';'): s.kind='meta'; return
        if op.startswith('v_mfma'):
            s.kind='mfma'; s.d=regs(ops[0]); s.u=regs(ops[1])+regs(ops[2]); s.c=regs(ops[3]); s.u+=s.c
        elif op.startswith('buffer_load') or op.startswith('global_load'):
            s.kind='vmem'
            if txt.rstrip().endswith(' lds'): s.u=regs(rest)+[('s','m0')]; s.dma=True
            else: s.d=regs(ops[0]); s.u=regs(','.join(ops[1:]))
        elif op.startswith('buffer_store') or op.startswith('global_store') or op.startswith('buffer_atomic'):
            s.kind='vmem'; s.u=regs(rest); s.sdata=regs(ops[0]) if ('x4' in op or 'x3' in op) else []
        elif op.startswith('ds_read'): s.kind='ds'; s.d=regs(ops[0]); s.u=regs(','.join(ops[1:]))
        elif op.startswith('ds_write'): s.kind='ds'; s.u=regs(rest)
        elif op.startswith('v_'):
            s.kind='valu'; s.d=regs(ops[0]); s.u=regs(','.join(ops[1:]))
            if op.startswith('v_fmac') or op.startswith('v_permlane'): s.u+=s.d
            if op.startswith('v_permlane'): s.d=s.d+regs(ops[1])
            if op.startswith('v_cndmask') and len(ops)==3: s.u.append(('s','vcc'))
        elif op.startswith('s_load'): s.kind='smem'; s.d=regs(ops[0]); s.u=regs(ops[1])
        elif op.startswith('s_memrealtime') or op.startswith('s_memtime'): s.kind='smem'; s.d=regs(ops[0])
        elif op in('s_waitcnt','s_barrier','s_nop','s_endpgm','s_sleep','s_setprio') or op.startswith('s_cbranch') or op=='s_branch': s.kind='ctl'
        elif op.startswith('s_cmp'): s.kind='salu'; s.u=regs(rest)
        elif op.startswith('s_'): s.kind='salu'; s.d=regs(ops[0]); s.u=regs(','.join(ops[1:]))
        else: raise Exception('unk '+txt)
    def cost(s):
        if s.kind=='meta': return 0
        if s.op in TRANS: return 2
        return 1
class Prog:
    def __init__(s): s.L=[]
    def e(s,*txts):
        for t in txts:
            if isinstance(t,I): s.L.append(t)
            elif isinstance(t,(list,tuple)): s.e(*t)
            else:
                for ln in t.split('\n'):
                    ln=ln.strip()
                    if ln: s.L.append(I(ln))
    def finalize(s):
        out=[]; vm=[]; ds=[]
        def wait(v=None,l=None):
            t='s_waitcnt'
            if v is not None:
                assert v<=63; t+=' vmcnt(%d)'%v; del vm[:len(vm)-v]
            if l is not None:
                l=min(l,15); t+=' lgkmcnt(%d)'%l; del ds[:len(ds)-l]
            if out and out[-1].op=='s_waitcnt' and not ('vmcnt' in out[-1].txt and v is not None) and not ('lgkmcnt' in out[-1].txt and l is not None):
                out[-1]=I(out[-1].txt+t[9:])
            else: out.append(I(t))
        for ins in s.L:
            if ins.op==';waitvm':
                tags=ins.txt.split()[1:]
                idx=[i for i,x in enumerate(vm) if x.tag in tags]
                if idx: wait(v=len(vm)-1-max(idx))
                continue
            if ins.op==';drainvm':
                if vm: wait(v=0)
                continue
            if ins.op==';drainds':
                if ds: wait(l=0)
                continue
            if ins.op==';resetvm': del vm[:]; continue
            touched=set(ins.u)|set(ins.d)
            iv=[i for i,x in enumerate(vm) if touched&set(x.d)]
            il=[i for i,x in enumerate(ds) if touched&set(x.d)]
            v=len(vm)-1-max(iv) if iv else None
            l=len(ds)-1-max(il) if il else None
            if l is not None and any(x.kind=='smem' for x in ds): l=0
            if v is not None or l is not None: wait(v,l)
            if ins.op=='s_waitcnt':
                m=re.search(r'vmcnt\((\d+)\)',ins.txt)
                if m: del vm[:max(0,len(vm)-int(m.group(1)))]
                m=re.search(r'lgkmcnt\((\d+)\)',ins.txt)
                if m: del ds[:max(0,len(ds)-int(m.group(1)))]
            out.append(ins)
            if ins.kind=='vmem':
                vm.append(ins)
                if len(vm)>63: raise Exception('vmcnt overflow')
            if ins.kind in('ds','smem'): ds.append(ins)
        res=[]
        def states(i):
            if i.kind=='meta': return 0
            if i.op=='s_nop': return int(i.txt.split()[1])+1
            return 1
        nops=0
        for ins in out:
            need=0
            if ins.kind!='meta':
                dist=0; U=set(ins.u); D=set(ins.d)
                for p in reversed(res):
                    if dist>=13: break
                    r=0; pd=set(p.d)
                    if p.kind=='mfma':
                        if ins.kind=='mfma':
                            if pd&(U-set(ins.c)): r=12
                            elif pd&set(ins.c) and pd!=set(ins.c): r=10
                            elif pd&D and pd!=set(ins.c): r=12
                        elif pd&(U|D): r=12
                        if ins.kind!='mfma' and set(p.c)&D: r=max(r,7)
                    if p.kind=='valu':
                        if ins.kind=='mfma' and pd&U: r=2
                        if p.op in TRANS and ins.kind in('valu','ds','vmem','mfma') and pd&U: r=max(r,1)
                        sg={x for x in pd if x[0]=='s'}
                        if sg&U: r=max(r,5 if ins.kind=='vmem' else 2 if ins.kind=='valu' else 1)
                        if ins.op.startswith(('v_readfirstlane','v_readlane')) and pd&U: r=max(r,1)
                        if (ins.op.startswith('v_permlane') or 'dpp' in ins.op or 'quad_perm' in ins.txt or 'row_' in ins.txt) and pd&U: r=max(r,2)
                    if p.kind=='vmem' and getattr(p,'sdata',None) and set(p.sdata)&D: r=max(r,2)
                    if p.kind=='salu' and ('s','m0') in pd and getattr(ins,'dma',False): r=max(r,1)
                    need=max(need,r-dist)
                    dist+=states(p)
            if need>0:
                res.append(I('s_nop %d'%(need-1))); nops+=1
            res.append(ins)
        s.nops=nops
        return '\n'.join(('' if i.kind=='meta' else '  ')+i.txt for i in res if not i.op.startswith(';'))
```

```python
from core import *
import struct
def f2u(x): return '0x%08x'%struct.unpack('<I',struct.pack('<f',x))[0]
A2RB=168*1024; W2OFF=64*A2RB; W2NT=168*2048; GOFF=W2OFF+7*W2NT; EOFF=GOFF+16384; WSEND=EOFF+14*4096
BIG=0x7ffffff0
SLOT=16384; MISC=9*SLOT
def srd(P,r,base,n,add=0):
    if add>0: P.e(f's_add_u32 s{r}, s{base}, {add}',f's_addc_u32 s{r+1}, s{base+1}, 0')
    elif add<0: P.e(f's_sub_u32 s{r}, s{base}, {-add}',f's_subb_u32 s{r+1}, s{base+1}, 0')
    else: P.e(f's_mov_b32 s{r}, s{base}',f's_mov_b32 s{r+1}, s{base+1}')
    P.e(f's_mov_b32 s{r+2}, {n}',f's_mov_b32 s{r+3}, 0x00020000')
class Win:
    def __init__(s,regs): s.regs=regs; s.cur=0
    def at(s,lo,hi,pre):
        if not(lo>=s.cur and hi-s.cur<=65535):
            new=lo; d=(new-s.cur)&0xffffffff
            for r in s.regs: pre.append(I(f'v_add_u32 v{r}, 0x{d:x}, v{r}'))
            s.cur=new
        return -s.cur
def cfma(d,a,b,c,t):
    return [f'v_fma_f32 v{t}, v{a[0]}, v{b[0]}, v{c[0]}', f'v_fma_f32 v{t+1}, v{a[0]}, v{b[1]}, v{c[1]}',
            f'v_fma_f32 v{t}, -v{a[1]}, v{b[1]}, v{t}' if d[0] in b else f'v_fma_f32 v{d[0]}, -v{a[1]}, v{b[1]}, v{t}',
            f'v_fma_f32 v{d[1]}, v{a[1]}, v{b[0]}, v{t+1}'] + ([f'v_mov_b32 v{d[0]}, v{t}'] if d[0] in b else [])
def cmul(d,a,b,t):
    return [f'v_mul_f32 v{t}, v{a[1]}, v{b[1]}', f'v_mul_f32 v{t+1}, v{a[1]}, v{b[0]}',
            f'v_fma_f32 v{d[0]}, v{a[0]}, v{b[0]}, -v{t}', f'v_fma_f32 v{d[1]}, v{a[0]}, v{b[1]}, v{t+1}']
VXO=[1,2,3,4]; VWO=[5,6,7,8]; VBO=[9,10,11,12]
XA0=[13,14,15,16]; XA1=[17,18,19,20]; WA=[21,22]
VST=[23,24]; VC0=25; VE=26; VTW=27; VTR=28; VEP=29; VFL=30; VEL=31; VPOLL=32; VFLD=33
LAM=(34,35); L16=(36,37); L128=(38,39); MM=(40,41); C2=(42,43); PP=(44,45); EE=(46,47); HH=(48,49); ST=(50,51); ST2=(52,53)
CIN=[54,55,56]; TMPC=58
ACCA=64; ACCS=128; ACCB1=160; ACCB2=64; WF=192; T=208; EL=96
def xa(b,ks): r=(b*28+ks)*4; return f'a[{r}:{r+3}]'
def vr(r,n): return f'v[{r}:{r+n-1}]'
def gelu_tile(acc,tb,store,pk=False):
    o=[]; out=tb+8
    for e in range(0,8,2):
        g0,g1,u0,u1=acc+e,acc+e+1,acc+8+e,acc+9+e; t=tb+(e&2)*2
        if pk:
            o+=[f'v_pk_mul_f32 v[{t}:{t+1}], v[{g0}:{g1}], v[{g0}:{g1}]',
                f'v_pk_fma_f32 v[{t}:{t+1}], v[{t}:{t+1}], s[44:45], v[{VC0+31}:{VC0+32}]',
                f'v_pk_mul_f32 v[{t}:{t+1}], v[{t}:{t+1}], v[{g0}:{g1}]',
                f'v_exp_f32 v{t}, v{t}',f'v_exp_f32 v{t+1}, v{t+1}',
                f'v_pk_mul_f32 v[{t+2}:{t+3}], v[{g0}:{g1}], v[{u0}:{u1}]',
                f'v_pk_add_f32 v[{t}:{t+1}], v[{t}:{t+1}], 1.0 op_sel_hi:[1,0]',
                f'v_rcp_f32 v{t}, v{t}',f'v_rcp_f32 v{t+1}, v{t+1}','s_nop 0',
                f'v_pk_mul_f32 v[{t}:{t+1}], v[{t}:{t+1}], v[{t+2}:{t+3}]',
                f'v_cvt_pk_bf16_f32 v{out+e//2}, v{t}, v{t+1}']
        else:
            o+=[f'v_mul_f32 v{t}, v{g0}, v{g0}',f'v_mul_f32 v{t+1}, v{g1}, v{g1}',
                f'v_fma_f32 v{t}, v{t}, s44, v{VC0}',f'v_fma_f32 v{t+1}, v{t+1}, s44, v{VC0}',
                f'v_mul_f32 v{t}, v{t}, v{g0}',f'v_mul_f32 v{t+1}, v{t+1}, v{g1}',
                f'v_exp_f32 v{t}, v{t}',f'v_mul_f32 v{t+2}, v{g0}, v{u0}',f'v_exp_f32 v{t+1}, v{t+1}',
                f'v_mul_f32 v{t+3}, v{g1}, v{u1}',f'v_add_f32 v{t}, 1.0, v{t}',f'v_add_f32 v{t+1}, 1.0, v{t+1}',
                f'v_rcp_f32 v{t}, v{t}',f'v_rcp_f32 v{t+1}, v{t+1}',
                f'v_mul_f32 v{t}, v{t}, v{t+2}',f'v_mul_f32 v{t+1}, v{t+1}, v{t+3}',
                f'v_cvt_pk_bf16_f32 v{out+e//2}, v{t}, v{t+1}']
    o.append(store(out))
    return o
def main_wg(P,opt):
    e=P.e
    e('v_lshrrev_b32 v60, 6, v0','v_and_b32 v0, 63, v0','v_readfirstlane_b32 s40, v60')
    e('s_lshl_b32 s36, s40, 12','s_and_b32 s41, s40, 1','s_lshr_b32 s42, s40, 1')
    e('v_lshrrev_b32 v61, 3, v0','v_and_b32 v62, 7, v0','v_lshrrev_b32 v63, 4, v0')
    e('v_xor_b32 v58, v62, v63','v_lshlrev_b32 v58, 4, v58')
    e('v_lshrrev_b32 v59, 5, v0','v_and_b32 v60, 3, v61','v_lshl_add_u32 v59, v59, 4, v60')
    e('s_lshl_b32 s46, s38, 7','s_lshl_b32 s47, s40, 5','s_add_u32 s46, s46, s47','v_add_u32 v59, s46, v59')
    e('s_movk_i32 s47, 896','v_mad_u32_u24 v1, v59, s47, v58')
    e('v_xor_b32 v2, 64, v58','v_mad_u32_u24 v2, v59, s47, v2','v_add_u32 v2, 2560, v2','v_add_u32 v3, 5120, v1','v_add_u32 v4, 5120, v2')
    e('v_and_b32 v59, 1, v63','v_lshlrev_b32 v59, 1, v59','v_xor_b32 v59, v59, v62','v_lshlrev_b32 v59, 4, v59')
    e('s_lshl_b32 s46, s39, 8','v_add_u32 v59, s46, v59','s_lshl_b32 s46, s40, 4','v_add_u32 v60, s46, v61')
    e('s_movk_i32 s47, 3584','v_mad_u32_u24 v5, v60, s47, v59',f'v_add_u32 v6, {8*3584-1024}, v5','v_xor_b32 v7, 64, v5','v_xor_b32 v8, 64, v6')
    e(';drainds')
    srd(P,4,48,2048*896); srd(P,8,68,448*3584); srd(P,12,70,448*3584+2048,-2048)
    items=[]
    for c in range(7): items+=[('X',c),('A',c)]
    items+=[('S',i) for i in range(4)]+[('Q',c) for c in range(7)]
    def slot(n): return (n%9)*SLOT
    def itn(k,c): return items.index((k,c))
    def dma(n):
        k,c=items[n]; o=[I(f's_add_u32 m0, s36, {slot(n)}')]
        if k=='X': o.append(I(f's_movk_i32 s37, {128*c}')); L=[(VXO[i],4) for i in range(4)]
        elif k in 'AQ': o.append(I(f's_mov_b32 s37, {c*64*3584+(128 if k=="Q" else 0)}')); L=[(5,8),(6,8),(7,12),(8,12)]
        else:
            o.append(I(f's_add_u32 s37, s43, {256*c}' if c<3 else 's_mov_b32 s37, s82')); L=[(VBO[i],16) for i in range(4)]
        for i,(v,s) in enumerate(L): o.append(I(f'buffer_load_dwordx4 v{v}, s[{s}:{s+3}], s37 offen offset:{1024*i} lds',tag=f'it{n}'))
        return o
    e(dma(0),dma(1))
    e('v_and_b32 v57, 31, v0','s_lshl_b32 s46, s39, 5','v_add_u32 v59, s46, v57','v_lshlrev_b32 v59, 1, v59')
    for k,base in enumerate((50,52,62)):
        srd(P,32,base,896); e(f'buffer_load_ushort v{CIN[k]}, v59, s[32:35], 0 offen')
    for n in range(2,9): e(dma(n))
    e('v_add_u32 v59, s46, v61','s_movk_i32 s47, 896','v_mad_u32_u24 v9, v59, s47, v58','v_xor_b32 v10, 64, v58','v_mad_u32_u24 v10, v59, s47, v10',
      f'v_add_u32 v10, {7168-1024}, v10',f'v_add_u32 v11, {2*(7168-1024)}, v9',f'v_add_u32 v12, {2*(7168-1024)}, v10')
    e('s_cmp_eq_u32 s41, 0','s_cselect_b32 s16, s54, s56','s_cselect_b32 s17, s55, s57',f's_mov_b32 s18, {448*896}','s_mov_b32 s19, 0x00020000')
    e('s_lshl_b32 s43, s42, 7','s_cmp_eq_u32 s42, 0','s_movk_i32 s82, 768',f's_cselect_b32 s82, s82, {BIG}')
    srd(P,20,80,WSEND); srd(P,28,78,256)
    e('s_lshl_b32 s46, s39, 12',f's_add_u32 s46, s46, {EOFF}','s_add_u32 s24, s80, s46','s_addc_u32 s25, s81, 0','s_movk_i32 s26, 4096','s_mov_b32 s27, 0x00020000')
    e('v_lshrrev_b32 v60, 5, v0','v_bfe_u32 v59, v0, 1, 3','v_xor_b32 v59, v59, v60','v_lshlrev_b32 v59, 4, v59','v_lshl_add_u32 v59, v57, 7, v59')
    e('s_lshl_b32 s46, s41, 1','s_add_u32 s83, s46, s42','s_lshl_b32 s46, s83, 12','v_add_u32 v13, s46, v59')
    for s in range(1,4): e(f'v_xor_b32 v{XA0[s]}, {32*s}, v13')
    for s in range(4): e(f'v_xor_b32 v{XA1[s]}, 4096, v{XA0[s]}')
    e('v_bfe_u32 v59, v0, 4, 1','v_bfe_u32 v61, v0, 2, 2','v_lshrrev_b32 v62, 1, v61','v_lshl_add_u32 v62, v59, 1, v62','s_lshl_b32 s46, s42, 1','v_xor_b32 v62, s46, v62',
      'v_lshlrev_b32 v62, 5, v62','v_lshl_add_u32 v62, v59, 11, v62','v_lshl_add_u32 v61, v60, 3, v61','v_lshl_add_u32 v62, v61, 7, v62','v_and_b32 v61, 3, v0','v_lshl_add_u32 v21, v61, 3, v62','v_xor_b32 v22, 32, v21')
    e(f'v_lshlrev_b32 v59, 3, v0','s_lshl_b32 s46, s40, 9',f's_add_u32 s46, s46, {MISC}','v_add_u32 v59, s46, v59','v_mov_b32 v62, 0','v_mov_b32 v63, 0','ds_write_b64 v59, v[62:63]')
    F=[]
    def fill(lst,at=0):
        for x in lst: F.append([x if isinstance(x,I) else I(x),at])
    su=[f's_mov_b32 s44, {f2u(-0.10294323970)}','s_mov_b32 s45, s44',f'v_mov_b32 v{VC0}, {f2u(-2.302208198)}',
        's_lshl_b32 s46, s38, 2','s_add_u32 s46, s46, s83',f's_mul_i32 s47, s46, {A2RB}','s_xor_b32 s46, s46, 1',f's_mul_i32 s46, s46, {A2RB}',
        's_lshl_b32 s84, s39, 13','s_lshl_b32 s85, s42, 11','s_add_u32 s84, s84, s85','v_lshl_add_u32 v59, v0, 4, s84','v_add_u32 v23, s47, v59','v_add_u32 v24, s46, v59',
        's_lshl_b32 s85, s39, 12',f's_add_u32 s85, s85, {112*1024}','s_sub_u32 s85, s85, s84','s_movk_i32 s86, 4096',
        's_lshl_b32 s46, s83, 9',f's_add_u32 s46, s46, {MISC}','v_lshl_add_u32 v59, v60, 5, v57',f'v_lshl_add_u32 v{VE}, v59, 3, s46',
        's_lshl_b32 s46, s40, 13',f's_add_u32 s46, s46, {7*SLOT}','s_movk_i32 s47, 576','v_lshl_add_u32 v59, v57, 2, s46',f'v_mad_u32_u24 v{VTW}, v60, s47, v59',
        's_movk_i32 s47, 144','v_lshl_add_u32 v59, v60, 4, s46',f'v_mad_u32_u24 v{VTR}, v57, s47, v59',
        's_sub_u32 s46, 15, s38','s_lshl_b32 s46, s46, 8','v_lshl_add_u32 v59, v57, 3, s46',f'v_add_u32 v{VEL}, 256, v59',
        ';atomic','s_cmp_eq_u32 s83, 3','s_cselect_b32 s47, 32, 64',';endatomic','v_cmp_le_u32 vcc, s47, v0',f'v_mov_b32 v61, {BIG}','s_lshl_b32 s46, s39, 4',f'v_cndmask_b32 v{VEP}, v61, v59, vcc',
        'v_cmp_eq_u32 vcc, s47, v0','s_add_u32 s47, s46, s38','v_mov_b32 v59, s47',f'v_cndmask_b32 v{VFL}, v61, v59, vcc',
        'v_and_b32 v59, 15, v0',f'v_add_u32 v{VPOLL}, s46, v59','v_cmp_le_u32 s[88:89], s38, v59',f'v_mov_b32 v{VFLD}, 1']
    a,b,ld=CIN; t=T
    su+=[f'v_lshlrev_b32 v{a}, 16, v{a}',f'v_lshlrev_b32 v{b}, 16, v{b}',f'v_lshlrev_b32 v{ld}, 16, v{ld}',
        f'v_mul_f32 v{ld}, {f2u(1.4426950408889634)}, v{ld}',f'v_exp_f32 v{ld}, v{ld}','s_nop 0',f'v_cvt_pk_bf16_f32 v{ld}, v{ld}, v{ld}',f'v_lshlrev_b32 v{ld}, 16, v{ld}',
        f'v_mul_f32 v{t}, v{ld}, v{a}',f'v_mul_f32 v{t+1}, v{ld}, v{b}',f'v_mul_f32 v{t}, {f2u(1.4426950408889634)}, v{t}',f'v_mul_f32 v{t+1}, 0.15915494, v{t+1}',
        f'v_exp_f32 v{t}, v{t}',f'v_rndne_f32 v{t+2}, v{t+1}',f'v_sub_f32 v{t+1}, v{t+1}, v{t+2}',f'v_cos_f32 v{t+2}, v{t+1}',f'v_sin_f32 v{t+3}, v{t+1}',
        f'v_mul_f32 v{t+4}, v{a}, v{a}',f'v_mul_f32 v{LAM[0]}, v{t}, v{t+2}',f'v_mul_f32 v{LAM[1]}, v{t}, v{t+3}',f'v_fma_f32 v{t+4}, v{b}, v{b}, v{t+4}',f'v_rcp_f32 v{t+4}, v{t+4}',
        f'v_add_f32 v{t}, -1.0, v{LAM[0]}',f'v_add_f32 v{t+4}, v{t+4}, v{t+4}',
        f'v_mul_f32 v{t+1}, v{t}, v{a}',f'v_mul_f32 v{t+2}, v{LAM[1]}, v{a}',f'v_fma_f32 v{t+1}, v{LAM[1]}, v{b}, v{t+1}',f'v_fma_f32 v{t+2}, -v{t}, v{b}, v{t+2}',
        f'v_mul_f32 v{C2[0]}, v{t+1}, v{t+4}',f'v_mul_f32 v{C2[1]}, v{t+2}, v{t+4}']
    q=[(t+6,t+7),(t+8,t+9)]
    su+=cmul(q[0],LAM,LAM,t)+cmul(q[1],q[0],q[0],t)+cmul(q[0],q[1],q[1],t)+cmul(L16,q[0],q[0],t)
    su+=cmul(q[0],L16,L16,t)+cmul(q[1],q[0],q[0],t)+cmul(L128,q[1],q[1],t)
    su+=['v_cmp_le_u32 vcc, 32, v0',';atomic','s_cmp_eq_u32 s42, 0','s_cselect_b64 s[90:91], 0, -1','s_cmp_eq_u32 s41, 0','s_cselect_b64 s[92:93], 0, -1',';endatomic',
        f'v_cndmask_b32 v{t+10}, 1.0, v{L16[0]}, vcc',f'v_cndmask_b32 v{t+11}, 0, v{L16[1]}, vcc',
        f'v_cndmask_b32 v{q[0][0]}, 1.0, v{q[0][0]}, s[90:91]',f'v_cndmask_b32 v{q[0][1]}, 0, v{q[0][1]}, s[90:91]',
        f'v_cndmask_b32 v{q[1][0]}, 1.0, v{q[1][0]}, s[92:93]',f'v_cndmask_b32 v{q[1][1]}, 0, v{q[1][1]}, s[92:93]']
    su+=cmul((t+12,t+13),(t+10,t+11),q[0],t)+cmul(MM,(t+12,t+13),q[1],t)
    su+=[f'v_mov_b32 v{VC0+31}, v{VC0}',f'v_mov_b32 v{VC0+32}, v{VC0}']
    fill(su,2)
    M=[]
    wx=Win(XA0+XA1); ww=Win(WA)
    def rd_A(c,s,pre,buf):
        n=itn('X',c); o=[]; off=wx.at(slot(n),slot(n)+16383,pre)+slot(n)
        o+=[I(f'ds_read_b128 {xa(0,4*c+s)}, v{XA0[s]} offset:{off}'),I(f'ds_read_b128 {xa(1,4*c+s)}, v{XA1[s]} offset:{off}')]
        n=itn('A',c); off=ww.at(slot(n),slot(n)+16383,pre)+slot(n)+4096*s
        w=[I(f'ds_read_b64_tr_b16 {vr(WF+8*buf+4*u+2*q,2)}, v{WA[u]} offset:{off+512*q}') for u in range(2) for q in range(2)]
        return [w[0],w[1],o[0],o[1],w[2],w[3]]
    def rd_S(c,s,pre,buf):
        n=itn('S',c//2); off=wx.at(slot(n),slot(n)+16383,pre)+slot(n)+8192*(c&1)
        return [I(f'ds_read_b128 {vr(WF+8*buf+4*m,4)}, v{XA0[s]} offset:{off+4096*m}') for m in range(2)]
    def rd_Q(u):
        def f(c,s,pre,buf):
            n=itn('Q',c); off=ww.at(slot(n),slot(n)+16383,pre)+slot(n)+4096*s
            return [I(f'ds_read_b64_tr_b16 {vr(WF+8*buf+2*q,2)}, v{WA[u]} offset:{off+512*q}') for q in range(2)]
        return f
    steps=[(ph,c,s) for ph in ('A','S','B1','B2') for c in range(7) for s in range(4)]
    rd={'A':rd_A,'S':rd_S,'B1':rd_Q(0),'B2':rd_Q(1)}
    def sync(tags,issue):
        return [I(';drainds'),I(';waitvm '+' '.join('it%d'%itn(*x) for x in tags)),I('s_barrier')], sum((dma(n) for n in issue),[])
    SY={}
    for c in range(1,7): SY[('A',c,0)]=([('X',c),('A',c)],[9+2*(c-1),10+2*(c-1)])
    SY[('S',0,0)]=([('S',0)],[21,22]); SY[('S',2,0)]=([('S',1)],[23]); SY[('S',4,0)]=([('S',2),('S',3)],[24])
    SY[('B1',0,0)]=([('Q',i) for i in range(5)],[]); SY[('B1',opt['xc'],0)]=([('Q',5),('Q',6)],[])
    pr,_=sync([('X',0),('A',0)],[]); e(pr); pre=[]; r=rd_A(0,0,pre,0); e(pre,r)
    start={}
    for i,(ph,c,s) in enumerate(steps):
        buf=i&1; ks=4*c+s; start.setdefault(ph,len(M)); start[(ph,c,s)]=len(M)
        z=lambda acc: ('0' if ks==0 else vr(acc,16))
        if ph=='A': mf=[f'v_mfma_f32_32x32x16_bf16 {vr(ACCA+32*u+16*b,16)}, {vr(WF+8*buf+4*u,4)}, {xa(b,ks)}, {z(ACCA+32*u+16*b)}' for u in range(2) for b in range(2)]
        elif ph=='S': mf=[f'v_mfma_f32_32x32x16_bf16 {vr(ACCS+16*m,16)}, {xa(0,ks)}, {vr(WF+8*buf+4*m,4)}, {z(ACCS+16*m)}' for m in range(2)]
        else:
            acc=ACCB1 if ph=='B1' else ACCB2
            mf=[f'v_mfma_f32_32x32x16_bf16 {vr(acc+16*b,16)}, {vr(WF+8*buf,4)}, {xa(b,ks)}, {z(acc+16*b)}' for b in range(2)]
        ent=[dict(pre=[],mf=I(m),post=[]) for m in mf]
        if i+1<len(steps):
            nx=steps[i+1]; pre=[]; dm=[]
            if nx==('S',0,0):
                pre+=[I('s_lshl_b32 s46, s83, 12')]+[I(f'v_subrev_u32 v{r}, s46, v{r}') for r in XA0]; wx.regs=XA0
            if nx in SY:
                pr,dm=sync(*SY[nx]); ent[0]['pre']+=pr
            r=rd[nx[0]](nx[1],nx[2],pre,buf^1)
            ent[0]['post']+=pre
            k=len(ent); per=(len(r)+k-1)//k if opt.get('spread',1) else len(r)
            for jx,x in enumerate(r): ent[min(jx//per,k-1)]['post'].append(x)
            F[0:0]=[]
            if dm: ent[-1]['dma']=dm
        M+=ent
    stA=lambda u,b,so: (lambda out: I(f'buffer_store_dwordx4 {vr(out,4)}, v{VST[b]}, s[20:23], {so} offen offset:{1024*u}',tag='st'))
    epA=[gelu_tile(ACCA+32*u+16*b,T+12*((2*u+b)&1),stA(u,b,'0')) for u in range(2) for b in range(2)]
    epB1=[gelu_tile(ACCB1+16*b,T+12*b,stA(0,b,'s86')) for b in range(2)]
    epB2=[gelu_tile(ACCB2+16*b,T+12*b,stA(1,b,'s86'),pk=opt.get('pk',1)) for b in range(2)]
    U=lambda k:(ACCS+k,ACCS+16+k)
    p1=[]; cur=U(0); alt=[EE,ST]
    for k in range(1,16):
        d=alt[(k+1)&1]; p1+=cfma(d,LAM,cur,U(k),TMPC); cur=d
    assert cur==EE
    p1.append(f'ds_write_b64 v{VE}, v[{EE[0]}:{EE[1]}] offset:{7*256}')
    R=lambda i:(T+24-14+2*i+0,T+24-14+2*i+1)
    EX=232
    p2=[f'ds_read_b64 v[{EX+2*i}:{EX+2*i+1}], v{VE} offset:{256*i}' for i in range(7)]
    cur=(EX,EX+1); alt=[PP,ST]
    for i in range(1,7):
        d=alt[i&1]; p2+=cfma(d,L16,cur,(EX+2*i,EX+2*i+1),TMPC); cur=d
    assert cur==PP
    p2+=cfma(ST2,L16,PP,EE,TMPC)+[I(f'buffer_store_dwordx2 v[{ST2[0]}:{ST2[1]}], v{VEP}, s[24:27], 0 offen sc0 sc1',tag='pub')]
    flag=[';waitvm pub',f'buffer_store_byte v{VFLD}, v{VFL}, s[28:31], 0 offen sc0 sc1']
    poll0=[f'buffer_load_ubyte v{EX}, v{VPOLL}, s[28:31], 0 offen sc0 sc1']
    chk=[f'v_cmp_ne_u32 vcc, 0, v{EX}','s_nop 1','s_or_b64 s[94:95], vcc, s[88:89]','s_cmp_eq_u64 s[94:95], -1']
    poll1=chk+['s_cbranch_scc1 L_got','s_mov_b32 s46, 0','L_spin:','s_sleep 1',poll0[0],'s_waitcnt vmcnt(0)']+chk+['s_cbranch_scc1 L_got','s_add_u32 s46, s46, 1','s_cmp_lt_u32 s46, 0x40000','s_cbranch_scc1 L_spin','L_got:']
    pE=[f'buffer_load_dwordx2 v[{EL+2*i}:{EL+2*i+1}], v{VEL}, s[24:27], 0 offen offset:{256*i} sc0 sc1' for i in range(15)]
    p3=[]; cur=(EL+28,EL+29); alt=[HH,ST]
    for i in range(13,-1,-1):
        d=alt[i&1]; p3+=cfma(d,L128,cur,(EL+2*i,EL+2*i+1),TMPC); cur=d
    assert cur==HH
    p3+=cfma(ST,MM,HH,PP,TMPC); cur=ST
    for k in range(16):
        p3+=cfma(U(k),LAM,cur,U(k),TMPC); cur=U(k)
        o=(TMPC+2,TMPC+3); p3+=cmul(o,C2,cur,TMPC+4)+[f'v_cvt_pk_bf16_f32 v{EX+(k&3)}, v{o[0]}, -v{o[1]}',f'ds_write_b32 v{VTW}, v{EX+(k&3)} offset:{144*(8*(k//4)+k%4)}']
    p3+=[f'ds_read_b128 {vr(EL+4*q,4)}, v{VTR} offset:{32*q}' for q in range(4)]
    p4=[f'buffer_store_dwordx4 {vr(EL+4*q,4)}, v{VST[0]}, s[20:23], s85 offen offset:{1024*q}' for q in range(4)]
    S0,B10,B20=start['S'],start['B1'],start['B2']
    xb=start[('B1',opt['xc'],0)]-2
    fill(epA[0]+epA[1]+epA[2][:opt['a2']],S0+2)
    fill([I(';mark p1s')]+p1+[I(';mark p1e')],B10+2); fill(epA[2][opt['a2']:],B10+2); fill(p2,xb+1); fill(epA[3],xb+1); fill(flag,xb+1+opt['fd']); fill([I(';mark eAe')],0)
    fill(epB1[0],B20+2); fill(poll0,B20+opt['pl']); fill(epB1[1][:20],0); fill([I(';atomic')]+poll1+[I(';endatomic')]+pE,0); fill(epB1[1][20:],0); fill(p3,0); tail=epB2[0]+p4+epB2[1]
    DQ=[]
    for n,m in enumerate(M):
        if n==xb:
            while any(x[0].txt==';mark p1e' for x in F): e(F.pop(0)[0])
        if n==B20:
            while any(x[0].txt==';mark eAe' for x in F): e(F.pop(0)[0])
        e(m['pre'],m['mf'],m['post'])
        bud=opt['bud']-sum(x.cost() for x in m['post'])
        if DQ:
            k=3 if DQ[0].op.startswith('s_add') else 1
            for x in DQ[:k]: e(x); bud-=1 if x.kind!='vmem' else opt['dmac']
            del DQ[:k]
        DQ+=m.get('dma',[])
        while F and bud>0 and F[0][1]<=n:
            x=F.pop(0)[0]
            if x.txt==';atomic':
                while x.txt!=';endatomic': e(x); x=F.pop(0)[0]
            e(x); bud-=x.cost()
    assert not DQ
    print('leftover fillers',len(F))
    for x in F: e(x[0])
    e(tail); e('s_endpgm')
```

```python
from p1 import *
def prep(P):
    e=P.e
    e('v_lshrrev_b32 v60, 6, v0','v_and_b32 v0, 63, v0','v_readfirstlane_b32 s40, v60','s_lshl_b32 s38, s38, 2','s_add_u32 s38, s38, s40',';drainds')
    srd(P,4,48,2048*896); srd(P,8,72,1792*896); srd(P,12,58,448*896); srd(P,16,60,448*896); srd(P,20,80,WSEND); srd(P,24,74,896)
    e('v_lshrrev_b32 v1, 2, v0','v_and_b32 v2, 3, v0','v_lshlrev_b32 v3, 4, v2','s_lshl_b32 s41, s38, 4','v_add_u32 v4, s41, v1','s_movk_i32 s47, 896','v_mad_u32_u24 v5, v4, s47, v3')
    GX=16; GW=72; WD=128; CC=192
    e('v_cmp_gt_u32 vcc, 56, v0',f'v_mov_b32 v6, {BIG}','v_lshlrev_b32 v7, 4, v0','s_mul_i32 s42, s38, 14336','v_add_u32 v7, s42, v7','v_cndmask_b32 v7, v6, v7, vcc')
    for r in range(16):
        if r%4==0: e(f's_movk_i32 s43, {896*r}')
        e(f'buffer_load_dwordx4 {vr(WD+4*r,4)}, v7, s[8:11], s43 offen offset:{896*(r%4)}')
    e('s_lshr_b32 s44, s38, 3','s_and_b32 s45, s38, 7','s_lshl_b32 s46, s45, 4','v_add_u32 v8, s46, v1','s_lshl_b32 s46, s44, 6','v_add_u32 v9, s46, v3','v_mad_u32_u24 v9, v8, s47, v9')
    e('s_cmp_lt_u32 s38, 112',f's_cselect_b32 s46, 0, {BIG//2}','v_add_u32 v9, s46, v9')
    for n in range(4):
        e(f's_mov_b32 s43, {128*896*n}',f'buffer_load_dwordx4 {vr(CC+8*n,4)}, v9, s[12:15], s43 offen',f'buffer_load_dwordx4 {vr(CC+8*n+4,4)}, v9, s[16:19], s43 offen')
    for n in range(14):
        e(f'buffer_load_dwordx4 {vr(GX+4*n,4)}, v5, s[4:7], 0 offen offset:{64*n}',f'buffer_load_dwordx4 {vr(GW+4*n,4)}, v3, s[24:27], 0 offen offset:{64*n}')
    e('v_lshrrev_b32 v10, 3, v0',f's_mov_b32 s43, {W2NT}','v_mul_lo_u32 v10, v10, s43','v_bfe_u32 v11, v0, 2, 1','v_lshl_add_u32 v10, v11, 10, v10','v_lshl_add_u32 v10, v2, 7, v10',
      's_lshl_b32 s43, s38, 11',f's_add_u32 s43, s43, {W2OFF}','s_add_u32 s43, s43, s46','v_add_u32 v10, s43, v10','v_cndmask_b32 v10, v6, v10, vcc')
    e('s_mov_b32 s84, 0x05040100','s_mov_b32 s85, 0x07060302')
    O=224
    for h in range(2):
        for dd in range(8):
            o=O+4*((h*8+dd)&3)
            for pr in range(4):
                f0=8*(pr//2)+4*h+2*(pr%2)
                e(f'v_perm_b32 v{o+pr}, v{WD+4*(f0+1)+dd//2}, v{WD+4*f0+dd//2}, s{84+(dd&1)}')
            e(f'buffer_store_dwordx4 {vr(o,4)}, v10, s[20:23], 0 offen offset:{16*dd+512*h}')
    e('v_lshrrev_b32 v11, 6, v8',f's_mov_b32 s43, {W2NT}','v_mul_lo_u32 v11, v11, s43','v_bfe_u32 v12, v8, 5, 1','v_lshl_add_u32 v11, v12, 10, v11','v_and_b32 v12, 31, v8','v_lshl_add_u32 v11, v12, 4, v11',
      'v_lshl_add_u32 v11, v2, 11, v11','s_lshl_b32 s43, s44, 13',f's_add_u32 s43, s43, {W2OFF+112*2048}','s_add_u32 s43, s43, s46','v_add_u32 v11, s43, v11')
    e('s_cmp_lt_u32 s45, 4',f's_mov_b32 s86, {6*W2NT}',f's_cselect_b32 s86, s86, {BIG//2}')
    for n in range(4):
        if n<3: e(f's_mov_b32 s43, {2*n*W2NT}')
        else: e('s_mov_b32 s43, s86')
        for h in range(2):
            o=O+4*((2*n+h)&3)
            for c in range(4): e(f'v_perm_b32 v{o+c}, v{CC+8*n+4+2*h+c//2}, v{CC+8*n+2*h+c//2}, s{84+(c&1)}')
            e(f'buffer_store_dwordx4 {vr(o,4)}, v11, s[20:23], s43 offen offset:{512*h}')
    e('v_mov_b32 v12, 0','v_mov_b32 v13, 0','s_mov_b32 s43, 0xffff0000')
    for n in range(56):
        x,w=GX+n,GW+n
        e(f'v_lshlrev_b32 v14, 16, v{x}',f'v_and_b32 v{x}, s43, v{x}',f'v_lshlrev_b32 v15, 16, v{w}',f'v_and_b32 v{w}, s43, v{w}',
          f'v_mul_f32 v14, v14, v15',f'v_mul_f32 v{x}, v{x}, v{w}',f'v_cvt_pk_bf16_f32 v14, v14, v{x}',f'v_lshlrev_b32 v15, 16, v14','v_and_b32 v14, s43, v14',
          'v_add_f32 v12, v12, v15','v_add_f32 v13, v13, v14')
    e('v_add_f32 v12, v12, v13','v_add_f32_dpp v12, v12, v12 quad_perm:[1,0,3,2] row_mask:0xf bank_mask:0xf','v_add_f32_dpp v12, v12, v12 quad_perm:[2,3,0,1] row_mask:0xf bank_mask:0xf',
      'v_cvt_pk_bf16_f32 v12, v12, v12','v_lshlrev_b32 v12, 16, v12',f'v_mul_f32 v12, {f2u(-1.4426950408889634)}, v12','v_exp_f32 v12, v12','v_add_f32 v12, 1.0, v12','v_rcp_f32 v12, v12',
      'v_cvt_pk_bf16_f32 v12, v12, v12','v_lshlrev_b32 v12, 16, v12','v_sub_f32 v13, 1.0, v12','v_cvt_pk_bf16_f32 v13, v13, v13','v_lshlrev_b32 v13, 16, v13',
      'v_cmp_eq_u32 vcc, 0, v2','v_lshlrev_b32 v4, 3, v4',f'v_add_u32 v4, {GOFF}, v4','v_cndmask_b32 v4, v6, v4, vcc','buffer_store_dwordx2 v[12:13], v4, s[20:23], 0 offen','s_endpgm')
def k1(opt):
    P=Prog(); e=P.e
    e('s_cmp_ge_u32 s2, 256','s_cbranch_scc1 L1_end','s_load_dwordx16 s[48:63], s[0:1], 0','s_load_dwordx16 s[64:79], s[0:1], 64','s_load_dwordx2 s[80:81], s[0:1], 128')
    e('s_and_b32 s3, s2, 7','s_lshr_b32 s46, s2, 3','s_cmp_ge_u32 s46, 28','s_cbranch_scc1 L1_prep')
    if opt.get('map',0)==0:
        e('s_mul_i32 s47, s46, 37','s_lshr_b32 s47, s47, 8','s_and_b32 s38, s3, 3','s_lshl_b32 s38, s38, 2','s_add_u32 s38, s38, s47','s_mul_i32 s47, s47, 7','s_sub_u32 s46, s46, s47','s_lshr_b32 s39, s3, 2','s_mul_i32 s39, s39, 7','s_add_u32 s39, s39, s46')
    else:
        e('s_cmp_ge_u32 s46, 14','s_cselect_b32 s47, 1, 0','s_lshl_b32 s38, s3, 1','s_add_u32 s38, s38, s47','s_mul_i32 s47, s47, 14','s_sub_u32 s39, s46, s47')
    main_wg(P,opt); t=P.finalize(); print('k1 nops',P.nops)
    Q=Prog(); Q.e('L1_prep:','s_waitcnt lgkmcnt(0)','s_sub_u32 s46, s46, 28','s_lshl_b32 s46, s46, 3','s_add_u32 s38, s46, s3'); prep(Q)
    return t+'\n'+Q.finalize()+'\nL1_end:\n  s_endpgm\n'
def k2(opt):
    P=Prog(); e=P.e; D=opt['depth']
    e('s_cmp_ge_u32 s2, 224','s_cbranch_scc1 L2_end','s_load_dwordx2 s[48:49], s[0:1], 0','s_load_dwordx2 s[64:65], s[0:1], 64','s_load_dwordx2 s[76:77], s[0:1], 112','s_load_dwordx2 s[80:81], s[0:1], 128')
    e('s_and_b32 s3, s2, 7','s_lshr_b32 s46, s2, 3','s_mul_i32 s47, s46, 37','s_lshr_b32 s47, s47, 8','s_lshl_b32 s38, s3, 2','s_add_u32 s38, s38, s47','s_mul_i32 s47, s47, 7','s_sub_u32 s39, s46, s47')
    e('v_lshrrev_b32 v1, 6, v0','v_and_b32 v0, 63, v0','v_readfirstlane_b32 s40, v1','v_lshlrev_b32 v1, 4, v0','s_lshr_b32 s41, s40, 1','s_and_b32 s42, s40, 1')
    e('s_lshl_b32 s43, s38, 1','s_add_u32 s43, s43, s41',f's_mul_i32 s44, s43, {A2RB}','s_xor_b32 s45, s43, 1',f's_mul_i32 s45, s45, {A2RB}','s_mul_i32 s46, s40, 28672',
      's_add_u32 s44, s44, s46','s_add_u32 s45, s45, s46','v_add_u32 v2, s44, v1','v_add_u32 v3, s45, v1')
    e(f's_mul_i32 s44, s39, {W2NT}','s_lshl_b32 s46, s46, 1','s_add_u32 s44, s44, s46','s_lshl_b32 s45, s42, 10','s_add_u32 s44, s44, s45',f's_add_u32 s44, s44, {W2OFF}','v_add_u32 v4, s44, v1','v_xor_b32 v5, 1024, v4')
    e('s_mul_i32 s47, s40, 14','s_sub_u32 s47, 112, s47','s_lshl_b32 s50, s47, 10','s_lshl_b32 s51, s47, 11',';drainds')
    srd(P,20,80,WSEND)
    def loads(k):
        buf=16*(k%D); o=[]
        kk=k if k<28 else k-28
        if kk%4==0: o.append(f's_mov_b32 s52, {1024*kk}' if k<28 else f's_add_u32 s52, s50, {1024*kk}')
        if kk%2==0: o.append(f's_mov_b32 s53, {2048*kk}' if k<28 else f's_add_u32 s53, s51, {2048*kk}')
        o+=[f'buffer_load_dwordx4 a[{buf}:{buf+3}], v4, s[20:23], s53 offen offset:{2048*(kk%2)}',f'buffer_load_dwordx4 a[{buf+8}:{buf+11}], v2, s[20:23], s52 offen offset:{1024*(kk%4)}',
            f'buffer_load_dwordx4 a[{buf+4}:{buf+7}], v5, s[20:23], s53 offen offset:{2048*(kk%2)}',f'buffer_load_dwordx4 a[{buf+12}:{buf+15}], v3, s[20:23], s52 offen offset:{1024*(kk%4)}']
        return o
    for k in range(D): e(loads(k))
    srd(P,4,48,2048*896); srd(P,8,64,896); srd(P,12,76,2048*1792)
    e('v_and_b32 v6, 3, v0','v_bfe_u32 v7, v0, 2, 1','v_lshl_add_u32 v6, v7, 4, v6','v_bfe_u32 v7, v0, 3, 2','v_lshl_add_u32 v6, v7, 2, v6','s_lshl_b32 s44, s43, 5','v_add_u32 v6, s44, v6')
    e('v_lshlrev_b32 v7, 3, v6',f'v_add_u32 v7, {GOFF}, v7','v_xor_b32 v8, 256, v7')
    e('s_lshl_b32 s44, s39, 6','s_lshl_b32 s45, s42, 5','s_add_u32 s44, s44, s45','v_lshrrev_b32 v9, 5, v0','v_lshl_add_u32 v9, v9, 2, s44','v_lshlrev_b32 v10, 1, v9','s_movk_i32 s45, 896','v_mad_u32_u24 v11, v6, s45, v10','v_lshlrev_b32 v12, 1, v11')
    ex=['buffer_load_dwordx2 v[14:15], v7, s[20:23], 0 offen','buffer_load_dwordx2 v[16:17], v8, s[20:23], 0 offen']
    for g in range(4): ex+=[f'buffer_load_dwordx2 v[{20+2*g}:{21+2*g}], v11, s[4:7], 0 offen offset:{16*g}',f'buffer_load_dwordx2 v[{28+2*g}:{29+2*g}], v10, s[8:11], 0 offen offset:{16*g}']
    AF=64; AS=128
    for k in range(42):
        buf=16*(k%D); acc=AF if k<28 else AS; first=k in(0,28)
        nx=loads(k+D) if k+D<42 else []
        for q,(db,b) in enumerate(((0,0),(1,0),(0,1),(1,1))):
            r=acc+16*(2*b+db)
            e(f'v_mfma_f32_32x32x16_bf16 {vr(r,16)}, a[{buf+4*db}:{buf+4*db+3}], a[{buf+8+4*b}:{buf+8+4*b+3}], {"0" if first else vr(r,16)}')
        e(nx)
        if k==42-D: e(ex)
    e('s_mov_b32 s43, 0xffff0000')
    for g in range(4):
        for i in range(2):
            x,d=20+2*g+i,28+2*g+i; o=36+4*g+2*i
            e(f'v_lshlrev_b32 v18, 16, v{x}',f'v_and_b32 v{x}, s43, v{x}',f'v_lshlrev_b32 v19, 16, v{d}',f'v_and_b32 v{d}, s43, v{d}','v_mul_f32 v18, v18, v19',f'v_mul_f32 v{x}, v{x}, v{d}',
              f'v_cvt_pk_bf16_f32 v18, v18, v{x}',f'v_lshlrev_b32 v{o}, 16, v18',f'v_and_b32 v{o+1}, s43, v18')
    for q in (1,2,3):
        e(f's_xor_b32 s44, s40, {q}','s_mul_i32 s44, s44, 12288',f'v_add_u32 v{52+q}, s44, v1')
    e('s_mul_i32 s44, s40, 12288','v_add_u32 v52, s44, v1')
    for q in (1,2,3,0):
        g=14+2*(q>>1)
        for i in range(0,16,2):
            f,s=AF+16*q+i,AS+16*q+i
            if q==0: e(f'v_pk_add_f32 v[{s}:{s+1}], v[{s}:{s+1}], v[{36+i}:{37+i}]')
            e(f'v_pk_mul_f32 v[{f}:{f+1}], v[{f}:{f+1}], v[{g}:{g+1}] op_sel:[0,1] op_sel_hi:[1,1]',f'v_pk_fma_f32 v[{f}:{f+1}], v[{s}:{s+1}], v[{g}:{g+1}], v[{f}:{f+1}] op_sel_hi:[1,0,1]')
            if q and i%4==2: e(f'ds_write_b128 v{52+q}, {vr(f-2,4)} offset:{4096*(q-1)+256*(i-2)}')
    e(';drainds','s_barrier')
    for i in range(4):
        for k in range(3): e(f'ds_read_b128 {vr(AS+16*k+4*i,4)}, v52 offset:{4096*k+1024*i}')
    for i in range(4):
        for k in range(3):
            for h in (0,2): e(f'v_pk_add_f32 v[{AF+4*i+h}:{AF+4*i+h+1}], v[{AF+4*i+h}:{AF+4*i+h+1}], v[{AS+16*k+4*i+h}:{AS+16*k+4*i+h+1}]')
        e(f'buffer_store_dwordx4 {vr(AF+4*i,4)}, v12, s[12:15], 0 offen offset:{32*i}')
    e('L2_end:','s_endpgm')
    t=P.finalize(); print('k2 nops',P.nops); return t
NAME='gated_mix__ssm_conv_s5__glu_gated_geglu__prompt'
def desc(n,vg,acc): return f'''.amdhsa_kernel {n}
  .amdhsa_next_free_vgpr {vg}
  .amdhsa_next_free_sgpr 102
  .amdhsa_accum_offset {acc}
  .amdhsa_group_segment_fixed_size 0
  .amdhsa_kernarg_size 136
  .amdhsa_user_sgpr_count 2
  .amdhsa_user_sgpr_kernarg_segment_ptr 1
  .amdhsa_system_sgpr_workgroup_id_x 1
.end_amdhsa_kernel
'''
def build(opt,path):
    hdr=''.join(l for l in open(f'cdna_kernels/{NAME}.s.ref') if l.startswith(';') and '@launch' not in l and 'Override' not in l and 'grid=ceil' not in l)
    s=hdr+f'; @launch kernel=p1_kernel grid=(256,1,1) block=(256,1,1) lds=163840\n; @launch kernel=p2_kernel grid=(224,1,1) block=(256,1,1) lds=49152\n'
    s+='.amdgcn_target "amdgcn-amd-amdhsa--gfx950"\n.text\n'
    for n,body in (('p1_kernel',k1(opt)),('p2_kernel',k2(opt))):
        s+=f'.globl {n}\n.p2align 8\n.type {n},@function\n{n}:\n{body}\n'
    s+='.section .rodata,"a"\n.p2align 6\n'+desc('p1_kernel',480,256)+'.p2align 6\n'+desc('p2_kernel',192+16*opt['depth'],192)
    open(path,'w').write(s)
if __name__=='__main__':
    import sys,json
    opt=dict(xc=3,a2=20,fd=10,pl=8,bud=5,dmac=2,depth=10,pk=1,map=0)
    for a in sys.argv[2:]:
        k,v=a.split('='); opt[k]=int(v)
    build(opt,sys.argv[1])
```

```python
from core import *
import struct
def f2u(x): return '0x%08x'%struct.unpack('<I',struct.pack('<f',x))[0]
A2RB=168*1024; W2OFF=64*A2RB; W2NT=168*2048; GOFF=W2OFF+7*W2NT; EOFF=GOFF+16384; WSEND=EOFF+14*4096
BIG=0x7ffffff0
STOFF=0x1000000
def stamp(opt,r): return [I(f's_memrealtime s[{r}:{r+1}]')] if opt.get('stamp') else []
def stampout(P,opt,regs,koff):
    if not opt.get('stamp'): return
    P.e('s_waitcnt vmcnt(0)',f's_memrealtime s[98:99]','s_waitcnt lgkmcnt(0)',f's_mov_b32 s22, {2*STOFF}','s_lshl_b32 s46, s2, 8','s_lshl_b32 s47, s40, 6','s_add_u32 s46, s46, s47',f's_add_u32 s46, s46, {STOFF+koff}','v_mov_b32 v1, 0')
    for i,r in enumerate(regs+[98]): P.e(f'v_mov_b32 v2, s{r}',f'buffer_store_dword v2, v1, s[20:23], s46 offen offset:{4*i}')

SLOT=16384; MISC=9*SLOT
def srd(P,r,base,n,add=0):
    if add>0: P.e(f's_add_u32 s{r}, s{base}, {add}',f's_addc_u32 s{r+1}, s{base+1}, 0')
    elif add<0: P.e(f's_sub_u32 s{r}, s{base}, {-add}',f's_subb_u32 s{r+1}, s{base+1}, 0')
    else: P.e(f's_mov_b32 s{r}, s{base}',f's_mov_b32 s{r+1}, s{base+1}')
    P.e(f's_mov_b32 s{r+2}, {n}',f's_mov_b32 s{r+3}, 0x00020000')
class Win:
    def __init__(s,regs): s.regs=regs; s.cur=0
    def at(s,lo,hi,pre):
        if not(lo>=s.cur and hi-s.cur<=65535):
            new=lo; d=(new-s.cur)&0xffffffff
            for r in s.regs: pre.append(I(f'v_add_u32 v{r}, 0x{d:x}, v{r}'))
            s.cur=new
        return -s.cur
def cfma(d,a,b,c,t):
    return [f'v_fma_f32 v{t}, v{a[0]}, v{b[0]}, v{c[0]}', f'v_fma_f32 v{t+1}, v{a[0]}, v{b[1]}, v{c[1]}',
            f'v_fma_f32 v{t}, -v{a[1]}, v{b[1]}, v{t}' if d[0] in b else f'v_fma_f32 v{d[0]}, -v{a[1]}, v{b[1]}, v{t}',
            f'v_fma_f32 v{d[1]}, v{a[1]}, v{b[0]}, v{t+1}'] + ([f'v_mov_b32 v{d[0]}, v{t}'] if d[0] in b else [])
def cmul(d,a,b,t):
    return [f'v_mul_f32 v{t}, v{a[1]}, v{b[1]}', f'v_mul_f32 v{t+1}, v{a[1]}, v{b[0]}',
            f'v_fma_f32 v{d[0]}, v{a[0]}, v{b[0]}, -v{t}', f'v_fma_f32 v{d[1]}, v{a[0]}, v{b[1]}, v{t+1}']
VXO=[1,2,3,4]; VWO=[5,6,7,8]; VBO=[9,10,11,12]
XA0=[13,14,15,16]; XA1=[17,18,19,20]; WA=[21,22]
VST=[23,24]; VC0=25; VE=26; VTW=27; VTR=28; VEP=29; VFL=30; VEL=31; VPOLL=32; VFLD=33
LAM=(34,35); L16=(36,37); L128=(38,39); MM=(40,41); C2=(42,43); PP=(44,45); EE=(46,47); HH=(48,49); ST=(50,51); ST2=(52,53)
SA=[246,247,248,249]; WV=[250,251]
ELP=[2,10,12,14,16,18,236,238,240,242,244,246,248,252,254]
CIN=[54,55,56]; TMPC=58
ACCA=64; ACCS=128; ACCB1=160; ACCB2=64; WF=192; T=208; EL=96
def xa(b,ks): r=(b*28+ks)*4; return f'a[{r}:{r+3}]'
def vr(r,n): return f'v[{r}:{r+n-1}]'
def gelu_tile(acc,tb,store,pk=False):
    o=[]; out=tb+8
    for e in range(0,8,2):
        g0,g1,u0,u1=acc+e,acc+e+1,acc+8+e,acc+9+e; t=tb+(e&2)*2
        if pk:
            o+=[f'v_pk_mul_f32 v[{t}:{t+1}], v[{g0}:{g1}], v[{g0}:{g1}]',
                f'v_pk_fma_f32 v[{t}:{t+1}], v[{t}:{t+1}], s[44:45], v[{VC0+31}:{VC0+32}]',
                f'v_pk_mul_f32 v[{t}:{t+1}], v[{t}:{t+1}], v[{g0}:{g1}]',
                f'v_exp_f32 v{t}, v{t}',f'v_exp_f32 v{t+1}, v{t+1}',
                f'v_pk_mul_f32 v[{t+2}:{t+3}], v[{g0}:{g1}], v[{u0}:{u1}]',
                f'v_pk_add_f32 v[{t}:{t+1}], v[{t}:{t+1}], 1.0 op_sel_hi:[1,0]',
                f'v_rcp_f32 v{t}, v{t}',f'v_rcp_f32 v{t+1}, v{t+1}','s_nop 0',
                f'v_pk_mul_f32 v[{t}:{t+1}], v[{t}:{t+1}], v[{t+2}:{t+3}]',
                f'v_cvt_pk_bf16_f32 v{out+e//2}, v{t}, v{t+1}']
        else:
            o+=[f'v_mul_f32 v{t}, v{g0}, v{g0}',f'v_mul_f32 v{t+1}, v{g1}, v{g1}',
                f'v_fma_f32 v{t}, v{t}, s44, v{VC0}',f'v_fma_f32 v{t+1}, v{t+1}, s44, v{VC0}',
                f'v_mul_f32 v{t}, v{t}, v{g0}',f'v_mul_f32 v{t+1}, v{t+1}, v{g1}',
                f'v_exp_f32 v{t}, v{t}',f'v_mul_f32 v{t+2}, v{g0}, v{u0}',f'v_exp_f32 v{t+1}, v{t+1}',
                f'v_mul_f32 v{t+3}, v{g1}, v{u1}',f'v_add_f32 v{t}, 1.0, v{t}',f'v_add_f32 v{t+1}, 1.0, v{t+1}',
                f'v_rcp_f32 v{t}, v{t}',f'v_rcp_f32 v{t+1}, v{t+1}',
                f'v_mul_f32 v{t}, v{t}, v{t+2}',f'v_mul_f32 v{t+1}, v{t+1}, v{t+3}',
                f'v_cvt_pk_bf16_f32 v{out+e//2}, v{t}, v{t+1}']
    o.append(store(out))
    return o
def main_wg(P,opt):
    e=P.e
    e('v_lshrrev_b32 v60, 6, v0','v_and_b32 v0, 63, v0','v_readfirstlane_b32 s40, v60')
    e('s_lshl_b32 s36, s40, 12','s_and_b32 s41, s40, 1','s_lshr_b32 s42, s40, 1')
    e('v_lshrrev_b32 v61, 3, v0','v_and_b32 v62, 7, v0','v_lshrrev_b32 v63, 4, v0')
    e('v_xor_b32 v58, v62, v63','v_lshlrev_b32 v58, 4, v58')
    e('v_lshrrev_b32 v59, 5, v0','v_and_b32 v60, 3, v61','v_lshl_add_u32 v59, v59, 4, v60')
    e('s_lshl_b32 s46, s38, 7','s_lshl_b32 s47, s40, 5','s_add_u32 s46, s46, s47','v_add_u32 v59, s46, v59')
    e('s_movk_i32 s47, 896','v_mad_u32_u24 v1, v59, s47, v58')
    e('v_xor_b32 v2, 64, v58','v_mad_u32_u24 v2, v59, s47, v2','v_add_u32 v2, 2560, v2','v_add_u32 v3, 5120, v1','v_add_u32 v4, 5120, v2')
    e('s_lshl_b32 s46, s39, 5','v_add_u32 v59, s46, v61','v_mad_u32_u24 v9, v59, s47, v58','v_xor_b32 v10, 64, v58','v_mad_u32_u24 v10, v59, s47, v10',
      f'v_add_u32 v10, {7168-1024}, v10',f'v_add_u32 v11, {2*(7168-1024)}, v9',f'v_add_u32 v12, {2*(7168-1024)}, v10')
    e('s_lshl_b32 s43, s42, 7',';drainds')
    srd(P,4,48,2048*896)
    e('s_cmp_eq_u32 s41, 0','s_cselect_b32 s16, s54, s56','s_cselect_b32 s17, s55, s57',f's_mov_b32 s18, {448*896}','s_mov_b32 s19, 0x00020000')
    items=[('X',0),('S',0),('X',1),('X',2),('S',1),('X',3),('X',4),('S',2),('X',5),('X',6),('S',3)]+[('A',c) for c in range(7)]+[('Q',c) for c in range(7)]
    def slot(n): return (n%9)*SLOT
    def itn(k,c): return items.index((k,c))
    def dma(n):
        k,c=items[n]; o=[I(f's_add_u32 m0, s36, {slot(n)}')]
        if k=='X': o.append(I(f's_movk_i32 s37, {128*c}')); L=[(VXO[i],4) for i in range(4)]
        elif k in 'AQ': o.append(I(f's_mov_b32 s37, {c*64*3584+(128 if k=="Q" else 0)}')); L=[(5,8),(6,8),(7,12),(8,12)]
        else:
            o.append(I(f's_add_u32 s37, s43, {256*c}' if c<3 else 's_mov_b32 s37, s82')); L=[(VBO[i],16) for i in range(4)]
        for i,(v,s) in enumerate(L): o.append(I(f'buffer_load_dwordx4 v{v}, s[{s}:{s+3}], s37 offen offset:{1024*i} lds',tag=f'it{n}'))
        return o
    e(dma(0),dma(1))
    e('v_and_b32 v57, 31, v0','v_add_u32 v59, s46, v57','v_lshlrev_b32 v59, 1, v59')
    for k,base in enumerate((50,52,62)):
        srd(P,32,base,896); e(f'buffer_load_ushort v{CIN[k]}, v59, s[32:35], 0 offen')
    NP=opt['np']
    for n in range(2,NP): e(dma(n))
    e('v_and_b32 v59, 1, v63','v_lshlrev_b32 v59, 1, v59','v_xor_b32 v59, v59, v62','v_lshlrev_b32 v59, 4, v59')
    e('s_lshl_b32 s46, s39, 8','v_add_u32 v59, s46, v59','s_lshl_b32 s46, s40, 4','v_add_u32 v60, s46, v61')
    e('s_movk_i32 s47, 3584','v_mad_u32_u24 v5, v60, s47, v59',f'v_add_u32 v6, {8*3584-1024}, v5','v_xor_b32 v7, 64, v5','v_xor_b32 v8, 64, v6')
    srd(P,8,68,448*3584); srd(P,12,70,448*3584+2048,-2048)
    e('s_cmp_eq_u32 s42, 0','s_movk_i32 s82, 768',f's_cselect_b32 s82, s82, {BIG}')
    srd(P,20,80,WSEND); srd(P,28,78,256)
    e('s_lshl_b32 s46, s39, 12',f's_add_u32 s46, s46, {EOFF}','s_add_u32 s24, s80, s46','s_addc_u32 s25, s81, 0','s_movk_i32 s26, 4096','s_mov_b32 s27, 0x00020000')
    e('v_lshrrev_b32 v60, 5, v0','v_bfe_u32 v59, v0, 1, 3','v_xor_b32 v59, v59, v60','v_lshlrev_b32 v59, 4, v59','v_lshl_add_u32 v59, v57, 7, v59')
    e('s_lshl_b32 s46, s41, 1','s_add_u32 s83, s46, s42','s_lshl_b32 s46, s83, 12','v_add_u32 v13, s46, v59')
    for s in range(4): e(f'v_xor_b32 v{SA[s]}, {32*s}, v59')
    for s in range(1,4): e(f'v_xor_b32 v{XA0[s]}, {32*s}, v13')
    for s in range(4): e(f'v_xor_b32 v{XA1[s]}, 4096, v{XA0[s]}')
    e('v_bfe_u32 v59, v0, 4, 1','v_bfe_u32 v61, v0, 2, 2','v_lshrrev_b32 v62, 1, v61','v_lshl_add_u32 v62, v59, 1, v62','s_lshl_b32 s46, s42, 1','v_xor_b32 v62, s46, v62',
      'v_lshlrev_b32 v62, 5, v62','v_lshl_add_u32 v62, v59, 11, v62','v_lshl_add_u32 v61, v60, 3, v61','v_lshl_add_u32 v62, v61, 7, v62','v_and_b32 v61, 3, v0','v_lshl_add_u32 v21, v61, 3, v62','v_xor_b32 v22, 32, v21')
    e(f'v_lshlrev_b32 v59, 3, v0','s_lshl_b32 s46, s40, 9',f's_add_u32 s46, s46, {MISC}','v_add_u32 v59, s46, v59','v_mov_b32 v62, 0','v_mov_b32 v63, 0','ds_write_b64 v59, v[62:63]')
    F=[]
    def fill(lst,at=0):
        for x in lst: F.append([x if isinstance(x,I) else I(x),at])
    su=[f's_mov_b32 s44, {f2u(-0.10294323970)}','s_mov_b32 s45, s44',f'v_mov_b32 v{VC0}, {f2u(-2.302208198)}',
        's_lshl_b32 s46, s38, 2','s_add_u32 s46, s46, s83',f's_mul_i32 s47, s46, {A2RB}','s_xor_b32 s46, s46, 1',f's_mul_i32 s46, s46, {A2RB}',
        's_lshl_b32 s84, s39, 13','s_lshl_b32 s85, s42, 11','s_add_u32 s84, s84, s85','v_lshl_add_u32 v59, v0, 4, s84','v_add_u32 v23, s47, v59','v_add_u32 v24, s46, v59',
        's_lshl_b32 s85, s39, 12',f's_add_u32 s85, s85, {112*1024}','s_sub_u32 s85, s85, s84','s_movk_i32 s86, 4096',
        's_lshl_b32 s46, s83, 9',f's_add_u32 s46, s46, {MISC}','v_lshl_add_u32 v59, v60, 5, v57',f'v_lshl_add_u32 v{VE}, v59, 3, s46',
        's_lshl_b32 s46, s40, 13',f's_add_u32 s46, s46, {7*SLOT}','s_movk_i32 s47, 576','v_lshl_add_u32 v59, v57, 2, s46',f'v_mad_u32_u24 v{VTW}, v60, s47, v59',
        's_movk_i32 s47, 144','v_lshl_add_u32 v59, v60, 4, s46',f'v_mad_u32_u24 v{VTR}, v57, s47, v59',
        's_sub_u32 s46, 15, s38','s_lshl_b32 s46, s46, 8','v_lshl_add_u32 v59, v57, 3, s46',f'v_add_u32 v{VEL}, 256, v59',
        ';atomic','s_cmp_eq_u32 s83, 3','s_cselect_b32 s47, 32, 64',';endatomic','v_cmp_le_u32 vcc, s47, v0',f'v_mov_b32 v61, {BIG}','s_lshl_b32 s46, s39, 4',f'v_cndmask_b32 v{VEP}, v61, v59, vcc',
        'v_cmp_eq_u32 vcc, s47, v0','s_add_u32 s47, s46, s38','v_mov_b32 v59, s47',f'v_cndmask_b32 v{VFL}, v61, v59, vcc',
        'v_and_b32 v59, 15, v0','v_cmp_le_u32 s[88:89], s38, v59','v_add_u32 v59, s46, v59','v_add_u32 v61, 192, v0','v_cmp_gt_u32 vcc, 32, v0',f'v_cndmask_b32 v{VPOLL}, v61, v59, vcc','s_mov_b32 s89, 0',f'v_mov_b32 v{VFLD}, 1',
        ';atomic','s_cmp_ge_u32 s39, 7','s_cselect_b32 s3, 7, 0','s_sub_u32 s3, s39, s3',';endatomic',f's_mul_i32 s46, s3, {W2NT}','s_mul_i32 s47, s40, 57344','s_add_u32 s46, s46, s47','s_lshl_b32 s47, s41, 10','s_add_u32 s46, s46, s47',f's_add_u32 s46, s46, {W2OFF}',
        f'v_lshl_add_u32 v{WV[0]}, v0, 4, s46',f'v_xor_b32 v{WV[1]}, 1024, v{WV[0]}']
    a,b,ld=CIN; t=T
    su+=[f'v_lshlrev_b32 v{a}, 16, v{a}',f'v_lshlrev_b32 v{b}, 16, v{b}',f'v_lshlrev_b32 v{ld}, 16, v{ld}',
        f'v_mul_f32 v{ld}, {f2u(1.4426950408889634)}, v{ld}',f'v_exp_f32 v{ld}, v{ld}','s_nop 0',f'v_cvt_pk_bf16_f32 v{ld}, v{ld}, v{ld}',f'v_lshlrev_b32 v{ld}, 16, v{ld}',
        f'v_mul_f32 v{t}, v{ld}, v{a}',f'v_mul_f32 v{t+1}, v{ld}, v{b}',f'v_mul_f32 v{t}, {f2u(1.4426950408889634)}, v{t}',f'v_mul_f32 v{t+1}, 0.15915494, v{t+1}',
        f'v_exp_f32 v{t}, v{t}',f'v_rndne_f32 v{t+2}, v{t+1}',f'v_sub_f32 v{t+1}, v{t+1}, v{t+2}',f'v_cos_f32 v{t+2}, v{t+1}',f'v_sin_f32 v{t+3}, v{t+1}',
        f'v_mul_f32 v{t+4}, v{a}, v{a}',f'v_mul_f32 v{LAM[0]}, v{t}, v{t+2}',f'v_mul_f32 v{LAM[1]}, v{t}, v{t+3}',f'v_fma_f32 v{t+4}, v{b}, v{b}, v{t+4}',f'v_rcp_f32 v{t+4}, v{t+4}',
        f'v_add_f32 v{t}, -1.0, v{LAM[0]}',f'v_add_f32 v{t+4}, v{t+4}, v{t+4}',
        f'v_mul_f32 v{t+1}, v{t}, v{a}',f'v_mul_f32 v{t+2}, v{LAM[1]}, v{a}',f'v_fma_f32 v{t+1}, v{LAM[1]}, v{b}, v{t+1}',f'v_fma_f32 v{t+2}, -v{t}, v{b}, v{t+2}',
        f'v_mul_f32 v{C2[0]}, v{t+1}, v{t+4}',f'v_mul_f32 v{C2[1]}, v{t+2}, v{t+4}']
    q=[(t+6,t+7),(t+8,t+9)]
    su+=cmul(q[0],LAM,LAM,t)+cmul(q[1],q[0],q[0],t)+cmul(q[0],q[1],q[1],t)+cmul(L16,q[0],q[0],t)
    su+=cmul(q[0],L16,L16,t)+cmul(q[1],q[0],q[0],t)+cmul(L128,q[1],q[1],t)
    su+=['v_cmp_le_u32 vcc, 32, v0',';atomic','s_cmp_eq_u32 s42, 0','s_cselect_b64 s[90:91], 0, -1','s_cmp_eq_u32 s41, 0','s_cselect_b64 s[92:93], 0, -1',';endatomic',
        f'v_cndmask_b32 v{t+10}, 1.0, v{L16[0]}, vcc',f'v_cndmask_b32 v{t+11}, 0, v{L16[1]}, vcc',
        f'v_cndmask_b32 v{q[0][0]}, 1.0, v{q[0][0]}, s[90:91]',f'v_cndmask_b32 v{q[0][1]}, 0, v{q[0][1]}, s[90:91]',
        f'v_cndmask_b32 v{q[1][0]}, 1.0, v{q[1][0]}, s[92:93]',f'v_cndmask_b32 v{q[1][1]}, 0, v{q[1][1]}, s[92:93]']
    su+=cmul((t+12,t+13),(t+10,t+11),q[0],t)+cmul(MM,(t+12,t+13),q[1],t)
    su+=[f'v_mov_b32 v{VC0+31}, v{VC0}',f'v_mov_b32 v{VC0+32}, v{VC0}']
    fill(su,2)
    M=[]; PD=opt['pd']; FB=160
    wx=Win(XA0+XA1); ww=Win(WA); ws_=Win(SA)
    def rd_S(c,s,pre,i):
        n=itn('X',c); off=wx.at(slot(n),slot(n)+16383,pre)+slot(n)
        o=[I(f'ds_read_b128 {xa(0,4*c+s)}, v{XA0[s]} offset:{off}'),I(f'ds_read_b128 {xa(1,4*c+s)}, v{XA1[s]} offset:{off}')]
        n=itn('S',c//2); off=ws_.at(slot(n),slot(n)+16383,pre)+slot(n)+8192*(c&1)
        w=[I(f'ds_read_b128 {vr(FB+8*(i&3)+4*m,4)}, v{SA[s]} offset:{off+4096*m}') for m in range(2)]
        return [o[0],w[0],w[1],o[1]]
    def rd_A(c,s,pre,i):
        n=itn('A',c); off=ww.at(slot(n),slot(n)+16383,pre)+slot(n)+4096*s
        return [I(f'ds_read_b64_tr_b16 {vr(FB+8*(i&3)+4*u+2*q,2)}, v{WA[u]} offset:{off+512*q}') for u in range(2) for q in range(2)]
    def rd_Q(u):
        def f(c,s,pre,i):
            n=itn('Q',c); off=ww.at(slot(n),slot(n)+16383,pre)+slot(n)+4096*s
            return [I(f'ds_read_b64_tr_b16 {vr(WF+4*(i&3)+2*q,2)}, v{WA[u]} offset:{off+512*q}') for q in range(2)]
        return f
    steps=[(ph,c,s) for ph in ('S','A','B1','B2') for c in range(7) for s in range(4)]
    rd={'A':rd_A,'S':rd_S,'B1':rd_Q(0),'B2':rd_Q(1)}
    def sync(tags,issue):
        return [I(';drainds'),I(';waitvm '+' '.join('it%d'%itn(*x) for x in tags)),I('s_barrier')], sum((dma(n) for n in issue),[])
    SY={}
    fr={1:[9],2:[10,11],3:[12],4:[13,14],5:[15],6:[16,17]}
    for c in range(1,7): SY[('S',c,0)]=([('X',c)]+([('S',c//2)] if c%2==0 else []),fr[c])
    SY[('A',0,0)]=([('A',0)],[18,19])
    for c in range(1,7): SY[('A',c,0)]=([('A',c)],[19+c] if c<6 else [])
    q1=opt['q1']
    SY[('B1',0,0)]=([('Q',i) for i in range(q1)],[]); SY[('B1',q1,0)]=([('Q',i) for i in range(q1,7)],[])
    e(stamp(opt,48)); pr,_=sync([('X',0),('S',0)],[]); e(pr); e(stamp(opt,50))
    for i in range(PD):
        pre=[]; r=rd_S(0,i,pre,i); e(pre,r)
    start={}; synat={}
    for i,(ph,c,s) in enumerate(steps):
        ks=4*c+s; start.setdefault(ph,len(M)); start[(ph,c,s)]=len(M)
        z=lambda acc: ('0' if ks==0 else vr(acc,16))
        if ph=='A': mf=[f'v_mfma_f32_32x32x16_bf16 {vr(ACCA+32*u+16*b,16)}, {vr(FB+8*(i&3)+4*u,4)}, {xa(b,ks)}, {z(ACCA+32*u+16*b)}' for u in range(2) for b in range(2)]
        elif ph=='S': mf=[f'v_mfma_f32_32x32x16_bf16 {vr(ACCS+16*m,16)}, {xa(0,ks)}, {vr(FB+8*(i&3)+4*m,4)}, {z(ACCS+16*m)}' for m in range(2)]
        else:
            acc=ACCB1 if ph=='B1' else ACCB2
            mf=[f'v_mfma_f32_32x32x16_bf16 {vr(acc+16*b,16)}, {vr(WF+4*(i&3),4)}, {xa(b,ks)}, {z(acc+16*b)}' for b in range(2)]
        ent=[dict(pre=[],mf=I(m),post=[]) for m in mf]
        if i+PD<len(steps):
            nx=steps[i+PD]; pre=[]; dm=[]
            if nx in SY:
                pr,dm=sync(*SY[nx]); ent[0]['pre']+=pr; synat[nx]=len(M)
            r=rd[nx[0]](nx[1],nx[2],pre,i+PD)
            ent[0]['post']+=pre
            k=len(ent); per=(len(r)+k-1)//k
            for jx,x in enumerate(r): ent[min(jx//per,k-1)]['post'].append(x)
            if dm: ent[0]['dma']=dm
        if ph=='B2' and ks>0:
            w=wload(ks-1); ent[0]['post']+=w[:-1]; ent[1]['post']+=w[-1:]
        M+=ent
    stA=lambda u,b,so: (lambda out: I(f'buffer_store_dwordx4 {vr(out,4)}, v{VST[b]}, s[20:23], {so} offen offset:{1024*u} sc1',tag='st'))
    pa=opt.get('pka',0)
    epA=[gelu_tile(ACCA+32*u+16*b,T+12*((2*u+b)&1),stA(u,b,'0'),pk=pa) for u in range(2) for b in range(2)]
    epB1=[gelu_tile(ACCB1+16*b,T+12*b,stA(0,b,'s86'),pk=pa) for b in range(2)]
    epB2=[gelu_tile(ACCB2+16*b,T+12*b,stA(1,b,'s86'),pk=opt.get('pk',1)) for b in range(2)]
    U=lambda k:(ACCS+k,ACCS+16+k)
    p1=[]; cur=U(0); alt=[EE,ST]
    for k in range(1,16):
        d=alt[(k+1)&1]; p1+=cfma(d,LAM,cur,U(k),TMPC); cur=d
    assert cur==EE
    p1.append(f'ds_write_b64 v{VE}, v[{EE[0]}:{EE[1]}] offset:{7*256}')
    EX=232
    p2=[f'ds_read_b64 v[{EX+2*i}:{EX+2*i+1}], v{VE} offset:{256*i}' for i in range(7)]
    cur=(EX,EX+1); alt=[PP,ST]
    for i in range(1,7):
        d=alt[i&1]; p2+=cfma(d,L16,cur,(EX+2*i,EX+2*i+1),TMPC); cur=d
    assert cur==PP
    p2+=cfma(ST2,L16,PP,EE,TMPC)+[I(f'buffer_store_dwordx2 v[{ST2[0]}:{ST2[1]}], v{VEP}, s[24:27], 0 offen sc0 sc1',tag='pub')]
    flag=[';waitvm pub',f'buffer_store_byte v{VFLD}, v{VFL}, s[28:31], 0 offen sc0 sc1']
    poll0=[f'buffer_load_ubyte v{EX}, v{VPOLL}, s[28:31], 0 offen sc0 sc1']
    chk=[f'v_cmp_ne_u32 vcc, 0, v{EX}','s_nop 1','s_or_b64 s[94:95], vcc, s[88:89]','s_cmp_eq_u64 s[94:95], -1']
    poll1=chk+['s_cbranch_scc1 L_got','s_mov_b32 s46, 0','L_spin:','s_sleep 1',poll0[0],'s_waitcnt vmcnt(0)']+chk+['s_cbranch_scc1 L_got','s_add_u32 s46, s46, 1','s_cmp_lt_u32 s46, 0x40000','s_cbranch_scc1 L_spin','L_got:']
    pE=[f'buffer_load_dwordx2 v[{ELP[i]}:{ELP[i]+1}], v{VEL}, s[24:27], 0 offen offset:{256*i} sc0 sc1' for i in range(14,-1,-1)]
    p3=[]; cur=(ELP[14],ELP[14]+1); alt=[HH,ST]
    for i in range(13,-1,-1):
        d=alt[i&1]; p3+=cfma(d,L128,cur,(ELP[i],ELP[i]+1),TMPC); cur=d
    assert cur==HH
    p3+=cfma(ST,MM,HH,PP,TMPC); cur=ST
    for k in range(16):
        p3+=cfma(U(k),LAM,cur,U(k),TMPC); cur=U(k)
        o=(TMPC+2,TMPC+3); p3+=cmul(o,C2,cur,TMPC+4)+[f'v_cvt_pk_bf16_f32 v{EX+(k&3)}, v{o[0]}, -v{o[1]}',f'ds_write_b32 v{VTW}, v{EX+(k&3)} offset:{144*(8*(k//4)+k%4)}']
    p3+=[f'ds_read_b128 {vr(ACCS+4*q,4)}, v{VTR} offset:{32*q}' for q in range(4)]
    p4=[f'buffer_store_dwordx4 {vr(ACCS+4*q,4)}, v{VST[0]}, s[20:23], s85 offen offset:{1024*q} sc1' for q in range(4)]
    A0,B10,B20=start['A'],start['B1'],start['B2']
    xb=synat[('A',opt['xc'],0)]
    fill(p1+[I(';mark p1e')],A0+2); fill(p2,xb+1); fill(flag,xb+1+opt['fd'])
    fill(poll0,B10+opt['pl']); fill(epA[0]+epA[1][:opt['a2']],B10+2)
    fill([I(';atomic')]+stamp(opt,62)+poll1+stamp(opt,64)+[I(';endatomic')]+pE,0); fill(epA[1][opt['a2']:]+[I(';mark eAe')]+epA[2],0)
    fill(p3[:60],0); fill(epA[3],0); fill(p3[60:],0); fill(epB1[0],B20+2); fill(p4+epB1[1],0); tail=wload(27)+epB2[0]+epB2[1]
    DQ=sum((dma(n) for n in range(NP,9)),[])
    for n,m in enumerate(M):
        if n==xb:
            while any(x[0].txt==';mark p1e' for x in F): e(F.pop(0)[0])
        if n==B20:
            while any(x[0].txt==';mark eAe' for x in F): e(F.pop(0)[0])
        if n in (A0,B10,B20): e(stamp(opt,{A0:52,B10:54,B20:56}[n]))
        for x in m['pre']:
            if x.txt.startswith(';waitvm'):
                while any(y.tag in x.txt.split() for y in DQ): e(DQ.pop(0))
            e(x)
        e(m['mf'],m['post'])
        bud=opt['bud']-sum(x.cost() for x in m['post'])
        DQ+=m.get('dma',[])
        if DQ:
            k=3 if DQ[0].op.startswith('s_add') else 1
            for x in DQ[:k]: e(x); bud-=1 if x.kind!='vmem' else opt['dmac']
            del DQ[:k]
        while F and bud>0 and F[0][1]<=n:
            x=F.pop(0)[0]
            if x.txt==';atomic':
                while x.txt!=';endatomic': e(x); x=F.pop(0)[0]
            e(x); bud-=x.cost()
    assert not DQ
    print('leftover fillers',len(F))
    e(stamp(opt,58))
    for x in F: e(x[0])
    e(tail); e(stamp(opt,60))
def wload(k,so=None):
    kk=k%28; o=[]
    if kk%2==0: o.append(I(f's_mov_b32 s87, {2048*kk}' if k<28 else f's_add_u32 s87, s51, {2048*kk}'))
    return o+[I(f'buffer_load_dwordx4 {xa(d,kk)}, v{WV[d]}, s[20:23], s87 offen offset:{2048*(kk%2)} sc1') for d in range(2)]
```

```python
from p1 import *
def prep(P,opt):
    e=P.e
    e('v_lshrrev_b32 v60, 6, v0','v_and_b32 v0, 63, v0','v_readfirstlane_b32 s40, v60','s_lshl_b32 s38, s38, 2','s_add_u32 s38, s38, s40',';drainds')
    srd(P,4,48,2048*896); srd(P,8,72,1792*896); srd(P,12,58,448*896); srd(P,16,60,448*896); srd(P,20,80,WSEND); srd(P,24,74,896)
    e('v_lshrrev_b32 v1, 2, v0','v_and_b32 v2, 3, v0','v_lshlrev_b32 v3, 4, v2','s_lshl_b32 s41, s38, 4','v_add_u32 v4, s41, v1','s_movk_i32 s47, 896','v_mad_u32_u24 v5, v4, s47, v3')
    GX=16; GW=72; WD=128; CC=192
    e('v_cmp_gt_u32 vcc, 56, v0',f'v_mov_b32 v6, {BIG}','v_lshlrev_b32 v7, 4, v0','s_mul_i32 s42, s38, 14336','v_add_u32 v7, s42, v7','v_cndmask_b32 v7, v6, v7, vcc')
    for r in range(16):
        if r%4==0: e(f's_movk_i32 s43, {896*r}')
        e(f'buffer_load_dwordx4 {vr(WD+4*r,4)}, v7, s[8:11], s43 offen offset:{896*(r%4)}')
    e('s_lshr_b32 s44, s38, 3','s_and_b32 s45, s38, 7','s_lshl_b32 s46, s45, 4','v_add_u32 v8, s46, v1','s_lshl_b32 s46, s44, 6','v_add_u32 v9, s46, v3','v_mad_u32_u24 v9, v8, s47, v9')
    e('s_cmp_lt_u32 s38, 112',f's_cselect_b32 s46, 0, {BIG//2}','v_add_u32 v9, s46, v9')
    for n in range(4):
        e(f's_mov_b32 s43, {128*896*n}',f'buffer_load_dwordx4 {vr(CC+8*n,4)}, v9, s[12:15], s43 offen',f'buffer_load_dwordx4 {vr(CC+8*n+4,4)}, v9, s[16:19], s43 offen')
    for n in range(14):
        e(f'buffer_load_dwordx4 {vr(GX+4*n,4)}, v5, s[4:7], 0 offen offset:{64*n}',f'buffer_load_dwordx4 {vr(GW+4*n,4)}, v3, s[24:27], 0 offen offset:{64*n}')
    e('v_lshrrev_b32 v10, 3, v0',f's_mov_b32 s43, {W2NT}','v_mul_lo_u32 v10, v10, s43','v_bfe_u32 v11, v0, 2, 1','v_lshl_add_u32 v10, v11, 10, v10','v_lshl_add_u32 v10, v2, 7, v10',
      's_lshl_b32 s43, s38, 11',f's_add_u32 s43, s43, {W2OFF}','s_add_u32 s43, s43, s46','v_add_u32 v10, s43, v10','v_cndmask_b32 v10, v6, v10, vcc')
    e('s_mov_b32 s84, 0x05040100','s_mov_b32 s85, 0x07060302')
    O=224
    for h in range(2):
        for dd in range(8):
            o=O+4*((h*8+dd)&3)
            for pr in range(4):
                f0=8*(pr//2)+4*h+2*(pr%2)
                e(f'v_perm_b32 v{o+pr}, v{WD+4*(f0+1)+dd//2}, v{WD+4*f0+dd//2}, s{84+(dd&1)}')
            e(f'buffer_store_dwordx4 {vr(o,4)}, v10, s[20:23], 0 offen offset:{16*dd+512*h} sc1')
    e('v_lshrrev_b32 v11, 6, v8',f's_mov_b32 s43, {W2NT}','v_mul_lo_u32 v11, v11, s43','v_bfe_u32 v12, v8, 5, 1','v_lshl_add_u32 v11, v12, 10, v11','v_and_b32 v12, 31, v8','v_lshl_add_u32 v11, v12, 4, v11',
      'v_lshl_add_u32 v11, v2, 11, v11','s_lshl_b32 s43, s44, 13',f's_add_u32 s43, s43, {W2OFF+112*2048}','s_add_u32 s43, s43, s46','v_add_u32 v11, s43, v11')
    e('s_cmp_lt_u32 s45, 4',f's_mov_b32 s86, {6*W2NT}',f's_cselect_b32 s86, s86, {BIG//2}')
    for n in range(4):
        if n<3: e(f's_mov_b32 s43, {2*n*W2NT}')
        else: e('s_mov_b32 s43, s86')
        for h in range(2):
            o=O+4*((2*n+h)&3)
            for c in range(4): e(f'v_perm_b32 v{o+c}, v{CC+8*n+4+2*h+c//2}, v{CC+8*n+2*h+c//2}, s{84+(c&1)}')
            e(f'buffer_store_dwordx4 {vr(o,4)}, v11, s[20:23], s43 offen offset:{512*h} sc1')
    e('v_mov_b32 v12, 0','v_mov_b32 v13, 0','s_mov_b32 s43, 0xffff0000')
    for n in range(56):
        x,w=GX+n,GW+n
        e(f'v_lshlrev_b32 v14, 16, v{x}',f'v_and_b32 v{x}, s43, v{x}',f'v_lshlrev_b32 v15, 16, v{w}',f'v_and_b32 v{w}, s43, v{w}',
          f'v_mul_f32 v14, v14, v15',f'v_mul_f32 v{x}, v{x}, v{w}',f'v_cvt_pk_bf16_f32 v14, v14, v{x}',f'v_lshlrev_b32 v15, 16, v14','v_and_b32 v14, s43, v14',
          'v_add_f32 v12, v12, v15','v_add_f32 v13, v13, v14')
    e('v_add_f32 v12, v12, v13','v_add_f32_dpp v12, v12, v12 quad_perm:[1,0,3,2] row_mask:0xf bank_mask:0xf','v_add_f32_dpp v12, v12, v12 quad_perm:[2,3,0,1] row_mask:0xf bank_mask:0xf',
      'v_cvt_pk_bf16_f32 v12, v12, v12','v_lshlrev_b32 v12, 16, v12',f'v_mul_f32 v12, {f2u(-1.4426950408889634)}, v12','v_exp_f32 v12, v12','v_add_f32 v12, 1.0, v12','v_rcp_f32 v12, v12',
      'v_cvt_pk_bf16_f32 v12, v12, v12','v_lshlrev_b32 v12, 16, v12','v_sub_f32 v13, 1.0, v12','v_cvt_pk_bf16_f32 v13, v13, v13','v_lshlrev_b32 v13, 16, v13',
      'v_cmp_eq_u32 vcc, 0, v2','v_lshlrev_b32 v4, 3, v4',f'v_add_u32 v4, {GOFF}, v4','v_cndmask_b32 v4, v6, v4, vcc','buffer_store_dwordx2 v[12:13], v4, s[20:23], 0 offen sc1')
    srd(P,28,78,256)
    e('s_lshr_b32 s46, s38, 2','s_add_u32 s46, s46, 224','v_mov_b32 v4, s46','s_cmp_eq_u32 s40, 0','s_cselect_b32 s47, 0, 64','v_cmp_eq_u32 vcc, s47, v0','v_mov_b32 v5, 3','v_cndmask_b32 v4, v6, v4, vcc',
      's_waitcnt vmcnt(0)','s_barrier','buffer_store_byte v5, v4, s[28:31], 0 offen sc0 sc1')
    stampout(P,opt,[96],0); e('s_endpgm')
def k1(opt):
    P=Prog(); e=P.e
    e(stamp(opt,96)); e('s_cmp_ge_u32 s2, 256','s_cbranch_scc1 L1_end','s_load_dwordx16 s[48:63], s[0:1], 0','s_load_dwordx16 s[64:79], s[0:1], 64','s_load_dwordx2 s[80:81], s[0:1], 128')
    e('s_and_b32 s3, s2, 7','s_lshr_b32 s46, s2, 3','s_cmp_ge_u32 s46, 28','s_cbranch_scc1 L1_prep')
    if opt.get('map',0)==0:
        e('s_mul_i32 s47, s46, 37','s_lshr_b32 s47, s47, 8','s_and_b32 s38, s3, 3','s_lshl_b32 s38, s38, 2','s_add_u32 s38, s38, s47','s_mul_i32 s47, s47, 7','s_sub_u32 s46, s46, s47','s_lshr_b32 s39, s3, 2','s_mul_i32 s39, s39, 7','s_add_u32 s39, s39, s46')
    else:
        e('s_cmp_ge_u32 s46, 14','s_cselect_b32 s47, 1, 0','s_lshl_b32 s38, s3, 1','s_add_u32 s38, s38, s47','s_mul_i32 s47, s47, 14','s_sub_u32 s39, s46, s47')
    main_wg(P,opt); k2(P,opt); t=P.finalize(); print('k1 nops',P.nops)
    Q=Prog(); Q.e('L1_prep:','s_waitcnt lgkmcnt(0)','s_sub_u32 s46, s46, 28','s_lshl_b32 s46, s46, 3','s_add_u32 s38, s46, s3'); prep(Q,opt)
    return t+'\n'+Q.finalize()+'\nL1_end:\n  s_endpgm\n'
def k2(P,opt):
    e=P.e; D=opt['depth']
    e('s_lshl_b32 s46, s39, 4','s_add_u32 s46, s46, s38','v_mov_b32 v4, s46','s_cmp_eq_u32 s40, 0','s_cselect_b32 s47, 0, 64','v_cmp_eq_u32 vcc, s47, v0','v_mov_b32 v5, 3',f'v_mov_b32 v6, {BIG}','v_cndmask_b32 v4, v6, v4, vcc')
    e('v_min_u32 v7, 13, v0','v_lshl_add_u32 v7, v7, 4, s38','v_lshlrev_b32 v1, 4, v0')
    e(';drainvm','s_barrier','buffer_store_byte v5, v4, s[28:31], 0 offen sc0 sc1')
    stampout(P,opt,[96,48,50,52,54,56,62,64,58,60],0)
    if opt.get('stamp'): e('v_lshlrev_b32 v1, 4, v0',f's_mov_b32 s22, {WSEND}',stamp(opt,54))
    e('s_load_dwordx2 s[48:49], s[0:1], 0','s_load_dwordx2 s[64:65], s[0:1], 64','s_load_dwordx2 s[76:77], s[0:1], 112')
    e('s_cmp_ge_u32 s39, 7','s_cselect_b32 s43, 2, 0','s_lshl_b32 s44, s38, 2','s_add_u32 s43, s43, s44','s_add_u32 s43, s43, s42',f's_mul_i32 s44, s43, {A2RB}','s_xor_b32 s45, s43, 1',f's_mul_i32 s45, s45, {A2RB}','s_mul_i32 s46, s40, 28672',
      's_add_u32 s44, s44, s46','s_add_u32 s45, s45, s46','v_add_u32 v2, s44, v1','v_add_u32 v3, s45, v1')
    e('s_mul_i32 s47, s40, 14','s_sub_u32 s47, 112, s47','s_lshl_b32 s50, s47, 10','s_lshl_b32 s51, s47, 11')
    e('v_and_b32 v6, 3, v0','v_bfe_u32 v8, v0, 2, 1','v_lshl_add_u32 v6, v8, 4, v6','v_bfe_u32 v8, v0, 3, 2','v_lshl_add_u32 v6, v8, 2, v6','s_lshl_b32 s44, s43, 5','v_add_u32 v6, s44, v6')
    e('v_lshlrev_b32 v13, 3, v6',f'v_add_u32 v13, {GOFF}, v13','v_xor_b32 v8, 256, v13')
    e('s_lshl_b32 s44, s3, 6','s_lshl_b32 s45, s41, 5','s_add_u32 s44, s44, s45','v_lshrrev_b32 v9, 5, v0','v_lshl_add_u32 v9, v9, 2, s44','v_lshlrev_b32 v10, 1, v9','s_movk_i32 s45, 896','v_mad_u32_u24 v11, v6, s45, v10','v_lshlrev_b32 v12, 1, v11',';drainds')
    srd(P,4,48,2048*896); srd(P,8,64,896); srd(P,12,76,2048*1792)
    e('buffer_load_dwordx2 v[14:15], v13, s[20:23], 0 offen sc1','buffer_load_dwordx2 v[16:17], v8, s[20:23], 0 offen sc1')
    XR,DR,XD=192,200,208
    for g in range(4): e(f'buffer_load_dwordx2 v[{XR+2*g}:{XR+1+2*g}], v11, s[4:7], 0 offen offset:{16*g}',f'buffer_load_dwordx2 v[{DR+2*g}:{DR+1+2*g}], v10, s[8:11], 0 offen offset:{16*g}')
    e('s_mov_b32 s43, 0xffff0000')
    for g in range(4):
        for i in range(2):
            x,d=XR+2*g+i,DR+2*g+i; o=XD+4*g+2*i
            e(f'v_lshlrev_b32 v18, 16, v{x}',f'v_and_b32 v{x}, s43, v{x}',f'v_lshlrev_b32 v19, 16, v{d}',f'v_and_b32 v{d}, s43, v{d}','v_mul_f32 v18, v18, v19',f'v_mul_f32 v{x}, v{x}, v{d}',
              f'v_cvt_pk_bf16_f32 v18, v18, v{x}',f'v_lshlrev_b32 v{o}, 16, v18',f'v_and_b32 v{o+1}, s43, v18')
    AF=64; AS=128
    for i in range(16): e(f'v_mov_b32 v{AS+i}, v{XD+i}')
    e('s_cmp_lg_u32 s40, 0','s_cbranch_scc1 L_got2','s_mov_b32 s46, 0','L_spin2:','buffer_load_ubyte v4, v7, s[28:31], 0 offen sc0 sc1','s_waitcnt vmcnt(0)','v_cmp_eq_u32 vcc, 3, v4','s_nop 1','s_cmp_eq_u64 vcc, -1','s_cbranch_scc1 L_got2',
      's_sleep 1','s_add_u32 s46, s46, 1','s_cmp_lt_u32 s46, 0x40000','s_cbranch_scc1 L_spin2','L_got2:','s_barrier')
    e(stamp(opt,56))
    BUF=[192,200,208,216,224,232,240,20,28,36,44,52][:D]
    def loads(k):
        buf=BUF[k%D]; o=[]
        kk=k if k<28 else k-28
        if kk%4==0: o.append(f's_mov_b32 s52, {1024*kk}' if k<28 else f's_add_u32 s52, s50, {1024*kk}')
        return o+[f'buffer_load_dwordx4 {vr(buf+4*b,4)}, v{2+b}, s[20:23], s52 offen offset:{1024*(kk%4)} sc1' for b in range(2)]
    for k in range(D): e(loads(k))
    for k in range(42):
        buf=BUF[k%D]; acc=AF if k<28 else AS; first=k in(0,28)
        for q,(db,b) in enumerate(((0,0),(1,0),(0,1),(1,1))):
            r=acc+16*(2*b+db)
            e(f'v_mfma_f32_32x32x16_bf16 {vr(r,16)}, {xa(db,k%28)}, {vr(buf+4*b,4)}, {"0" if first and not(k==28 and q==0) else vr(r,16)}')
            if q==0 and k>0 and k-1+D<42: e(loads(k-1+D))
            if q==2 and 0<k<15: e(wload(27+k))
        if k in (0,13,27,41): e(stamp(opt,{0:58,13:60,27:62,41:64}[k]))
    for q in (1,2,3):
        e(f's_xor_b32 s44, s40, {q}','s_mul_i32 s44, s44, 12288',f'v_add_u32 v{52+q}, s44, v1')
    e('s_mul_i32 s44, s40, 12288','v_add_u32 v52, s44, v1')
    for q in (1,2,3,0):
        g=14+2*(q>>1)
        for i in range(0,16,2):
            f,s=AF+16*q+i,AS+16*q+i
            e(f'v_pk_mul_f32 v[{f}:{f+1}], v[{f}:{f+1}], v[{g}:{g+1}] op_sel:[0,1] op_sel_hi:[1,1]',f'v_pk_fma_f32 v[{f}:{f+1}], v[{s}:{s+1}], v[{g}:{g+1}], v[{f}:{f+1}] op_sel_hi:[1,0,1]')
            if q and i%4==2: e(f'ds_write_b128 v{52+q}, {vr(f-2,4)} offset:{4096*(q-1)+256*(i-2)}')
    e(';drainds','s_barrier'); e(stamp(opt,66))
    for i in range(4):
        for k in range(3): e(f'ds_read_b128 {vr(AS+16*k+4*i,4)}, v52 offset:{4096*k+1024*i}')
    for i in range(4):
        for k in range(3):
            for h in (0,2): e(f'v_pk_add_f32 v[{AF+4*i+h}:{AF+4*i+h+1}], v[{AF+4*i+h}:{AF+4*i+h+1}], v[{AS+16*k+4*i+h}:{AS+16*k+4*i+h+1}]')
        e(f'buffer_store_dwordx4 {vr(AF+4*i,4)}, v12, s[12:15], 0 offen offset:{32*i}')
    stampout(P,opt,[96,54,56,58,60,62,64,66],0x100000); e('s_endpgm')
NAME='gated_mix__ssm_conv_s5__glu_gated_geglu__prompt'
def desc(n,vg,acc): return f'''.amdhsa_kernel {n}
  .amdhsa_next_free_vgpr {vg}
  .amdhsa_next_free_sgpr 102
  .amdhsa_accum_offset {acc}
  .amdhsa_group_segment_fixed_size 0
  .amdhsa_kernarg_size 136
  .amdhsa_user_sgpr_count 2
  .amdhsa_user_sgpr_kernarg_segment_ptr 1
  .amdhsa_system_sgpr_workgroup_id_x 1
.end_amdhsa_kernel
'''
def build(opt,path):
    hdr=''.join(l for l in open(f'cdna_kernels/{NAME}.s.ref') if l.startswith(';') and '@launch' not in l and 'Override' not in l and 'grid=ceil' not in l)
    s=hdr+'; @launch grid=(256,1,1) block=(256,1,1) lds=163840\n'
    s+='.amdgcn_target "amdgcn-amd-amdhsa--gfx950"\n.text\n'
    for n,body in ((NAME+'_kernel',k1(opt)),):
        s+=f'.globl {n}\n.p2align 8\n.type {n},@function\n{n}:\n{body}\n'
    s+='.section .rodata,"a"\n.p2align 6\n'+desc(NAME+'_kernel',480,256)
    open(path,'w').write(s)
if __name__=='__main__':
    import sys,json
    opt=dict(xc=2,a2=30,fd=24,pl=-4,bud=6,dmac=2,depth=12,pk=1,map=0,np=4,pd=2,q1=3)
    for a in sys.argv[2:]:
        k,v=a.split('='); opt[k]=int(v)
    build(opt,sys.argv[1])
```
